```python
import torch

def _softmax(x, axis=-1):
    return torch.softmax(x, dim=axis)
def _gelu(x):
    return torch.nn.functional.gelu(x, approximate="tanh")
def _silu(x):
    return torch.nn.functional.silu(x)
def _sigmoid(x):
    return torch.sigmoid(x)
def _layernorm(x, axis=-1, eps=1e-5):
    m = x.mean(dim=axis, keepdim=True)
    v = x.var(dim=axis, keepdim=True, unbiased=False)
    return (x - m) / torch.sqrt(v + eps)
def _scatter_add(tgt, idx, src, axis=0):
    return tgt.clone().index_add_(axis, idx, src)
def _segment_sum(src, seg, n):
    out = torch.zeros((n,) + src.shape[1:], dtype=src.dtype)
    return out.index_add_(0, seg, src)
def _pad(x, pw):
    flat = tuple(v for pair in reversed(pw) for v in pair)
    return torch.nn.functional.pad(x, flat)

kernel_name = 'standalone__low_rank_proj_linformer__prompt'

def setup_inputs():

    _w = (lambda a: (lambda t: t.to(torch.bfloat16) if t.is_floating_point() else t)(torch.as_tensor(a)))
    B, H, Sq, Skv, Dh, R = 1, 32, 2048, 2048, 192, 64
    return {
        "q": _w((lambda *s: torch.randn(*s, dtype=torch.bfloat16) * 0.8)(B, H, Sq, Dh)),
        "k": _w((lambda *s: torch.randn(*s, dtype=torch.bfloat16) * 0.8)(B, H, Skv, Dh)),
        "v": _w((lambda *s: torch.randn(*s, dtype=torch.bfloat16) * 0.05)(B, H, Skv, Dh)),
        "e_proj": _w((lambda *s: torch.randn(*s, dtype=torch.bfloat16) * 0.8)(R, Skv) * (Skv ** -0.5)),
        "f_proj": _w((lambda *s: torch.randn(*s, dtype=torch.bfloat16) * 0.05)(R, Skv) * (Skv ** -0.5)),
    }

def reference(q, k, v, e_proj, f_proj):
    B, H, Sq, Dh = q.shape
    kp = torch.einsum("rn,bhnd->bhrd", e_proj, k)
    vp = torch.einsum("rn,bhnd->bhrd", f_proj, v)
    scores = torch.einsum("bhqd,bhrd->bhqr", q, kp) * (Dh ** -0.5)
    p = _softmax(scores, axis=-1)
    o = torch.einsum("bhqr,bhrd->bhqd", p, vp)
    return o
```

```python
import re

VALU = ('valu', 'trans', 'permlane', 'dpp', 'readlane')
MFMA = ('mfma4', 'mfma8')
VMEM = ('vmem_ld', 'vmem_st')
DS = ('ds_rd', 'ds_wr')

def R(kind, a, n=1):
    return [f'{kind}{a+i}' for i in range(n)]

def T(kind, a, n=1):
    return f'{kind}{a}' if n == 1 else f'{kind}[{a}:{a+n-1}]'

class Ins:
    __slots__ = ('kind', 'w', 'r', 'ab', 'c', 'data', 'wide', 'ws', 'm0')
    def __init__(self, kind, w=(), r=(), ab=(), c=(), data=(), wide=False, ws=1, m0=False):
        self.kind = kind; self.w = set(w); self.r = set(r); self.ab = set(ab); self.c = set(c)
        self.data = set(data); self.wide = wide; self.ws = ws; self.m0 = m0

def is_v(r): return (r[0] == 'v' and r != 'vcc') or r[0] == 'a'
def is_s(r): return r[0] == 's' or r == 'vcc'

def req(P, C):
    n = 0
    if P.kind in VALU:
        vw = {r for r in P.w if is_v(r)}
        sw = {r for r in P.w if is_s(r)}
        if C.kind in MFMA and vw & C.r: n = max(n, 2)
        if C.kind == 'readlane' and vw & C.r: n = max(n, 1)
        if C.kind in ('permlane', 'dpp') and vw & C.r: n = max(n, 2)
        if P.kind == 'trans' and C.kind in VALU and C.kind != 'trans' and vw & (C.r | C.w): n = max(n, 1)
        if P.kind == 'trans' and C.kind in VMEM + DS and vw & C.r: n = max(n, 1)
        if sw & C.r:
            if C.kind in VMEM: n = max(n, 5)
            elif C.kind == 'readlane': n = max(n, 4)
            elif C.kind in VALU or C.kind in MFMA: n = max(n, 2)
            elif C.kind == 'salu': n = max(n, 1)
        if 'exec' in P.w: n = max(n, 5)
    if P.kind in MFMA:
        big = 8 if P.kind == 'mfma4' else 12
        D = P.w
        if C.kind in MFMA:
            if D & C.ab: n = max(n, big)
            if D & C.c:
                if C.c == D and C.kind == P.kind: pass
                else: n = max(n, 6 if P.kind == 'mfma4' else 10)
            elif D & C.w: n = max(n, big)
        elif C.kind in VALU or C.kind in VMEM or C.kind in DS:
            if D & (C.r | C.w): n = max(n, big)
        if (C.kind in VALU or C.kind in VMEM or C.kind in DS) and P.c & C.w:
            n = max(n, 3 if P.kind == 'mfma4' else 7)
    if P.kind == 'vmem_st' and P.wide:
        if P.data & C.w: n = max(n, 2)
    if P.kind == 'salu' and 'm0' in P.w and C.m0: n = max(n, 1)
    return n

def worst(P):
    if P.kind == 'mfma8': return 12
    if P.kind == 'mfma4': return 8
    if P.kind in VALU:
        return 5 if any(is_s(r) or r == 'exec' for r in P.w) else 2
    if P.kind == 'vmem_st' and P.wide: return 2
    if P.kind == 'salu' and 'm0' in P.w: return 1
    return 0

class Asm:
    def __init__(self):
        self.out = []
        self.hist = []
        self.nops = 0
    def raw(self, text):
        self.out.append(text)
    def comment(self, text):
        self.out.append('    ; ' + text)
    def _nop(self, k):
        while k > 0:
            n = min(k, 16)
            self.out.append(f'    s_nop {n-1}')
            self.hist.append(Ins('nop', ws=n))
            self.nops += n
            k -= n
    def emit(self, text, ins):
        need = 0
        d = 0
        for P in reversed(self.hist):
            if d >= 20: break
            need = max(need, req(P, ins) - d)
            d += P.ws
        if need > 0: self._nop(need)
        self.out.append('    ' + text)
        self.hist.append(ins)
        if len(self.hist) > 64: self.hist = self.hist[-40:]
    def flush(self):
        need = 0; d = 0
        for P in reversed(self.hist):
            if d >= 20: break
            need = max(need, worst(P) - d)
            d += P.ws
        if need > 0: self._nop(need)
    def label(self, name):
        self.flush()
        self.out.append(f'{name}:')
        self.hist = []
    @staticmethod
    def regs(tok):
        tok = tok.strip()
        tok = tok.lstrip('-')
        m = re.match(r'^abs\((.*)\)$', tok)
        if m: tok = m.group(1)
        m = re.match(r'^\|(.*)\|$', tok)
        if m: tok = m.group(1)
        if tok in ('vcc', 'exec', 'm0'): return [tok]
        if tok in ('vcc_lo', 'vcc_hi'): return ['vcc']
        if tok in ('exec_lo', 'exec_hi'): return ['exec']
        m = re.match(r'^([vsa])(\d+)$', tok)
        if m: return [tok]
        m = re.match(r'^([vsa])\[(\d+):(\d+)\]$', tok)
        if m: return [f'{m.group(1)}{i}' for i in range(int(m.group(2)), int(m.group(3)) + 1)]
        return []
    def valu(self, op, dst, *srcs, mods='', kind=None, rmw=False, extra_w=(), extra_r=()):
        if kind is None:
            kind = 'valu'
            if re.match(r'v_(exp|log|rcp|rsq|sqrt|sin|cos)_', op): kind = 'trans'
            if op.startswith('v_permlane'): kind = 'permlane'
            if op.startswith('v_readfirstlane') or op.startswith('v_readlane'): kind = 'readlane'
            if 'dpp' in op or 'quad_perm' in mods or 'row_' in mods: kind = 'dpp'
        w = self.regs(dst) + list(extra_w)
        r = []
        for s in srcs: r += self.regs(str(s))
        r += list(extra_r)
        if rmw or op.startswith('v_fmac') or op.startswith('v_permlane') or kind == 'dpp': r += self.regs(dst)
        if op.startswith('v_permlane'):
            w += self.regs(str(srcs[0]))
        if op.startswith('v_cndmask') and len(srcs) == 2: r.append('vcc')
        text = f'{op} {dst}' + ''.join(f', {s}' for s in srcs) + (' ' + mods if mods else '')
        self.emit(text, Ins(kind, w=w, r=r))
    def salu(self, op, *ops, nodst=False):
        w = [] if nodst else self.regs(str(ops[0]))
        r = []
        for s in (ops if nodst else ops[1:]): r += self.regs(str(s))
        text = f'{op} ' + ', '.join(str(o) for o in ops)
        self.emit(text, Ins('salu', w=w, r=r))
    def other(self, text):
        self.emit(text, Ins('other'))
    def waitcnt(self, vm=None, lgkm=None):
        t = 's_waitcnt'
        if vm is not None:
            assert 0 <= vm <= 63, vm
            t += f' vmcnt({vm})'
        if lgkm is not None:
            assert 0 <= lgkm <= 15, lgkm
            t += f' lgkmcnt({lgkm})'
        self.other(t)
    def barrier(self):
        self.other('s_barrier')
    def branch(self, op, target):
        self.flush()
        self.other(f'{op} {target}')
    def mfma(self, op, d, a, b, c):
        kind = 'mfma8' if '32x32' in op else 'mfma4'
        D = self.regs(d); A = self.regs(a); B = self.regs(b); Cc = self.regs(str(c))
        self.emit(f'{op} {d}, {a}, {b}, {c}', Ins(kind, w=D, r=A + B + Cc, ab=A + B, c=Cc))
    def bload(self, op, dst, voff, srd, soff, off=0, mods=''):
        assert 0 <= off < 4096, off
        t = f'{op} {dst}, {voff}, {srd}, {soff} offen' + (f' offset:{off}' if off else '') + (' ' + mods if mods else '')
        self.emit(t, Ins('vmem_ld', w=self.regs(dst), r=self.regs(voff) + self.regs(srd) + self.regs(str(soff))))
    def bload_lds(self, op, voff, srd, soff, off=0, mods=''):
        assert 0 <= off < 4096, off
        t = f'{op} {voff}, {srd}, {soff} offen' + (f' offset:{off}' if off else '') + (' ' + mods if mods else '') + ' lds'
        self.emit(t, Ins('vmem_ld', w=[], r=self.regs(voff) + self.regs(srd) + self.regs(str(soff)) + ['m0'], m0=True))
    def bstore(self, op, src, voff, srd, soff, off=0, mods=''):
        assert 0 <= off < 4096, off
        t = f'{op} {src}, {voff}, {srd}, {soff} offen' + (f' offset:{off}' if off else '') + (' ' + mods if mods else '')
        d = self.regs(src)
        self.emit(t, Ins('vmem_st', w=[], r=d + self.regs(voff) + self.regs(srd) + self.regs(str(soff)), data=d, wide=len(d) >= 3))
    def dsread(self, op, dst, addr, off=0):
        assert 0 <= off < 65536, off
        t = f'{op} {dst}, {addr}' + (f' offset:{off}' if off else '')
        self.emit(t, Ins('ds_rd', w=self.regs(dst), r=self.regs(addr)))
    def dswrite(self, op, addr, src, off=0):
        assert 0 <= off < 65536, off
        t = f'{op} {addr}, {src}' + (f' offset:{off}' if off else '')
        self.emit(t, Ins('ds_wr', w=[], r=self.regs(addr) + self.regs(src)))
    def smem(self, text, w):
        self.emit(text, Ins('smem', w=w))
    def text(self):
        return '\n'.join(self.out) + '\n'
```

```python
import sys, math, argparse
from asmlib import Asm, R, T

NAME = 'standalone__low_rank_proj_linformer__prompt'
HEADER = open('cdna_kernels/' + NAME + '.s.ref').read().split('; Override launch')[0]

TENSOR_BYTES = 25165824
HEAD_BYTES = 786432
ROW = 384
WS_HEAD = 49152

S_Q, S_K, S_V, S_E, S_F, S_O, S_DBG, S_WS = 4, 6, 8, 10, 12, 14, 16, 18
SRD_Q, SRD_KV, SRD_EF, SRD_O, SRD_WS, SRD_DBG = 20, 24, 28, 32, 36, 40
S_WAVE, S_HEAD, S_QB, S_TK = 44, 45, 46, 47
S_PLO, S_PHI = 48, 49
S_KOFF, S_EOFF = 50, 51
S_T0, S_T1, S_T2, S_T3 = 52, 53, 54, 55
S_QOFF = 56
S_WSOFF = 60
S_DS = 61
S_CNT = 62
S_SCALE = 63

def srd(n): return f's[{n}:{n+3}]'

class VM:
    def __init__(self, a): self.a = a; self.q = []
    def issue(self, tag): self.q.append(tag)
    def wait(self, tag):
        idx = max(i for i, t in enumerate(self.q) if t == tag)
        n = len(self.q) - 1 - idx
        self.a.waitcnt(vm=n)
        self.q = self.q[idx + 1:]
    def has(self, tag): return tag in self.q

def build_srd(a, d, p, nbytes):
    a.salu('s_mov_b32', f's{d}', f's{p}')
    a.salu('s_mov_b32', f's{d+1}', f's{p+1}')
    a.salu('s_mov_b32', f's{d+2}', hex(nbytes))
    a.salu('s_mov_b32', f's{d+3}', '0x00020000')

def prologue(a, nwg, end):
    a.salu('s_cmp_ge_u32', 's2', nwg, nodst=True)
    a.branch('s_cbranch_scc1', end)
    a.smem('s_load_dwordx16 s[4:19], s[0:1], 0', R('s', 4, 16))
    a.valu('v_lshrrev_b32', 'v2', 6, 'v0')
    a.valu('v_and_b32', 'v1', 63, 'v0')
    a.valu('v_readfirstlane_b32', f's{S_WAVE}', 'v2')
    a.salu('s_and_b32', f's{S_T0}', 's2', 7)
    a.salu('s_lshr_b32', f's{S_T1}', 's2', 3)
    a.salu('s_and_b32', f's{S_T2}', f's{S_T1}', 3)
    a.salu('s_lshl_b32', f's{S_HEAD}', f's{S_T0}', 2)
    a.salu('s_add_u32', f's{S_HEAD}', f's{S_HEAD}', f's{S_T2}')
    a.salu('s_lshr_b32', f's{S_TK}', f's{S_T1}', 2)
    a.salu('s_mov_b32', f's{S_QB}', f's{S_TK}')
    a.salu('s_mov_b32', f's{S_PLO}', '0x05040100')
    a.salu('s_mov_b32', f's{S_PHI}', '0x07060302')
    a.waitcnt(lgkm=0)
    build_srd(a, SRD_Q, S_Q, TENSOR_BYTES)
    build_srd(a, SRD_O, S_O, TENSOR_BYTES)
    build_srd(a, SRD_WS, S_WS, 32 * WS_HEAD)
    build_srd(a, SRD_DBG, S_DBG, 256)
    a.salu('s_cmp_lt_u32', f's{S_TK}', 3, nodst=True)
    a.salu('s_cselect_b32', f's{SRD_KV}', f's{S_K}', f's{S_V}')
    a.salu('s_cselect_b32', f's{SRD_KV+1}', f's{S_K+1}', f's{S_V+1}')
    a.salu('s_cselect_b32', f's{SRD_EF}', f's{S_E}', f's{S_F}')
    a.salu('s_cselect_b32', f's{SRD_EF+1}', f's{S_E+1}', f's{S_F+1}')
    a.salu('s_cselect_b32', f's{S_T0}', 0, 3)
    a.salu('s_sub_u32', f's{S_DS}', f's{S_TK}', f's{S_T0}')
    a.salu('s_mov_b32', f's{SRD_KV+2}', hex(TENSOR_BYTES))
    a.salu('s_mov_b32', f's{SRD_KV+3}', '0x00020000')
    a.salu('s_mov_b32', f's{SRD_EF+2}', hex(262144))
    a.salu('s_mov_b32', f's{SRD_EF+3}', '0x00020000')

V_LANE = 1
V_KOFF = 3
V_EOFF = 4
V_TMP = 8
V_F = 12
V_ACC = 28
V_BUF = 92
NBUF = 5
NCHUNK = 16

def phase1(a, isV, fused, opt, vm, after_last_issue=None, after_store=None):
    sfx = 'V' if isV else 'K'
    a.valu('v_and_b32', f'v{V_TMP}', 15, f'v{V_LANE}')
    a.valu('v_lshrrev_b32', f'v{V_TMP+1}', 4, f'v{V_LANE}')
    a.valu('v_mul_u32_u24', f'v{V_KOFF}', 8 * ROW, f'v{V_TMP+1}')
    a.valu('v_lshl_add_u32', f'v{V_KOFF}', f'v{V_TMP}', 3, f'v{V_KOFF}')
    if not isV:
        a.valu('v_lshlrev_b32', f'v{V_EOFF}', 12, f'v{V_TMP}')
        tile_rows = [0, 16, 32, 48]
    else:
        a.valu('v_and_b32', f'v{V_TMP+2}', 7, f'v{V_TMP}')
        a.valu('v_lshrrev_b32', f'v{V_TMP+3}', 3, f'v{V_TMP}')
        a.valu('v_lshl_add_u32', f'v{V_TMP+2}', f'v{V_TMP+3}', 4, f'v{V_TMP+2}')
        a.valu('v_lshlrev_b32', f'v{V_EOFF}', 12, f'v{V_TMP+2}')
        tile_rows = [0, 8, 32, 40]
    a.valu('v_lshl_add_u32', f'v{V_EOFF}', f'v{V_TMP+1}', 4, f'v{V_EOFF}')
    for t in (1, 2, 3):
        a.valu('v_add_u32', f'v{V_EOFF+t}', hex(tile_rows[t] * 4096), f'v{V_EOFF}')
    a.salu('s_mul_i32', f's{S_KOFF}', f's{S_HEAD}', HEAD_BYTES)
    a.salu('s_lshl_b32', f's{S_T0}', f's{S_DS}', 7)
    a.salu('s_add_u32', f's{S_KOFF}', f's{S_KOFF}', f's{S_T0}')
    a.salu('s_mul_i32', f's{S_T0}', f's{S_WAVE}', 64 * ROW)
    a.salu('s_add_u32', f's{S_KOFF}', f's{S_KOFF}', f's{S_T0}')
    a.salu('s_lshl_b32', f's{S_EOFF}', f's{S_WAVE}', 7)
    kmods = opt.kmods
    def issue(k):
        b = V_BUF + (k % NBUF) * 32
        for i in range(8):
            a.bload('buffer_load_dwordx2', T('v', b + 2 * i, 2), f'v{V_KOFF}', srd(SRD_KV), f's{S_KOFF}', off=i * ROW, mods=kmods)
            vm.issue(('c', k))
        for t in range(4):
            a.bload('buffer_load_dwordx4', T('v', b + 16 + 4 * t, 4), f'v{V_EOFF+t}', srd(SRD_EF), f's{S_EOFF}')
            vm.issue(('c', k))
        if k & 1 == 0:
            a.salu('s_add_u32', f's{S_KOFF}', f's{S_KOFF}', 32 * ROW)
            a.salu('s_add_u32', f's{S_EOFF}', f's{S_EOFF}', 64)
        else:
            a.salu('s_add_u32', f's{S_KOFF}', f's{S_KOFF}', 224 * ROW)
            a.salu('s_add_u32', f's{S_EOFF}', f's{S_EOFF}', 448)
    for k in range(NBUF): issue(k)
    for k in range(NCHUNK):
        b = V_BUF + (k % NBUF) * 32
        vm.wait(('c', k))
        for j in range(4):
            for m in range(4):
                s1 = b + 2 * (2 * m) + (j >> 1)
                s0 = b + 2 * (2 * m + 1) + (j >> 1)
                a.valu('v_perm_b32', f'v{V_F + 4*j + m}', f'v{s0}', f'v{s1}', f's{S_PHI if j & 1 else S_PLO}')
        for j in range(4):
            for t in range(4):
                o, z = (j, t) if isV else (t, j)
                acc = T('v', V_ACC + (o * 4 + z) * 4, 4)
                fk = T('v', V_F + 4 * j, 4)
                fe = T('v', b + 16 + 4 * t, 4)
                A, B = (fe, fk) if isV else (fk, fe)
                a.mfma('v_mfma_f32_16x16x32_bf16', acc, A, B, '0' if k == 0 else acc)
        if k + NBUF < NCHUNK:
            issue(k + NBUF)
            if k + NBUF == NCHUNK - 1 and after_last_issue: after_last_issue()
    a.salu('s_lshl_b32', f's{S_T0}', f's{S_WAVE}', 12)
    a.valu('v_lshl_add_u32', f'v{V_TMP}', f'v{V_LANE}', 4, f's{S_T0}')
    a.salu('s_lshl_b32', f's{S_T1}', f's{S_WAVE}', 14)
    a.valu('v_lshl_add_u32', f'v{V_TMP+1}', f'v{V_LANE}', 4, f's{S_T1}')
    for o in range(4):
        for z in range(4):
            a.dswrite('ds_write_b128', f'v{V_TMP}', T('v', V_ACC + (o * 4 + z) * 4, 4), off=o * 16384 + z * 1024)
    a.waitcnt(lgkm=0)
    a.barrier()
    RB = V_BUF
    for src in range(4):
        for z in range(4):
            a.dsread('ds_read_b128', T('v', RB + (src * 4 + z) * 4, 4), f'v{V_TMP+1}', off=src * 4096 + z * 1024)
    a.salu('s_mul_i32', f's{S_WSOFF}', f's{S_HEAD}', WS_HEAD)
    a.salu('s_lshl_b32', f's{S_T0}', f's{S_TK}', 13)
    a.salu('s_add_u32', f's{S_WSOFF}', f's{S_WSOFF}', f's{S_T0}')
    a.salu('s_lshl_b32', f's{S_T0}', f's{S_WAVE}', 11)
    a.salu('s_add_u32', f's{S_WSOFF}', f's{S_WSOFF}', f's{S_T0}')
    a.valu('v_lshlrev_b32', f'v{V_TMP+2}', 4, f'v{V_LANE}')
    a.waitcnt(lgkm=8)
    for e in range(16):
        a.valu('v_add_f32', f'v{RB+e}', f'v{RB+e}', f'v{RB+16+e}')
    a.waitcnt(lgkm=0)
    for e in range(16):
        a.valu('v_add_f32', f'v{RB+32+e}', f'v{RB+32+e}', f'v{RB+48+e}')
    for e in range(16):
        a.valu('v_add_f32', f'v{RB+e}', f'v{RB+e}', f'v{RB+32+e}')
    def sm(z, i): return f'v{RB + z*4 + i}'
    PK = V_F
    for u in range(2):
        if not isV:
            pairs = [(sm(0, 2*u), sm(1, 2*u)), (sm(2, 2*u), sm(3, 2*u)), (sm(0, 2*u+1), sm(1, 2*u+1)), (sm(2, 2*u+1), sm(3, 2*u+1))]
        else:
            pairs = [(sm(2*u, 0), sm(2*u, 1)), (sm(2*u, 2), sm(2*u, 3)), (sm(2*u+1, 0), sm(2*u+1, 1)), (sm(2*u+1, 2), sm(2*u+1, 3))]
        for m, (lo, hi) in enumerate(pairs):
            a.valu('v_cvt_pk_bf16_f32', f'v{PK + 4*u + m}', lo, hi)
    for u in range(2):
        a.bstore('buffer_store_dwordx4', T('v', PK + 4 * u, 4), f'v{V_TMP+2}', srd(SRD_WS), f's{S_WSOFF}', off=u * 1024,
                 mods='sc1' if fused else '')
        vm.issue('wsst')

P2_Q = 160
P2_QOFF = 208
P2_OOFF = 209
P2_LB = 210
P2_A = 211
P2_T = 216
P2_ST = 224
P2_S = 12
P2_P = 44
P2_FR = 60
P2_O = 64 + 12
P2_PKO = 224

def q_setup(a):
    a.valu('v_and_b32', f'v{P2_T}', 31, f'v{V_LANE}')
    a.valu('v_lshrrev_b32', f'v{P2_T+1}', 5, f'v{V_LANE}')
    a.valu('v_mul_u32_u24', f'v{P2_QOFF}', ROW, f'v{P2_T}')
    a.valu('v_lshl_add_u32', f'v{P2_QOFF}', f'v{P2_T+1}', 4, f'v{P2_QOFF}')
    a.valu('v_mul_u32_u24', f'v{P2_OOFF}', 12, f'v{P2_T}')
    a.valu('v_mul_u32_u24', f'v{P2_T+2}', 4 * ROW, f'v{P2_T+1}')
    a.valu('v_add_u32', f'v{P2_OOFF}', f'v{P2_OOFF}', f'v{P2_T+2}')
    a.valu('v_lshlrev_b32', f'v{P2_LB}', 4, f'v{V_LANE}')
    a.salu('s_mul_i32', f's{S_QOFF}', f's{S_HEAD}', HEAD_BYTES)
    a.salu('s_lshl_b32', f's{S_T0}', f's{S_QB}', 3)
    a.salu('s_add_u32', f's{S_T0}', f's{S_T0}', f's{S_WAVE}')
    a.salu('s_mul_i32', f's{S_T0}', f's{S_T0}', 32 * ROW)
    a.salu('s_add_u32', f's{S_QOFF}', f's{S_QOFF}', f's{S_T0}')
    for k in (1, 2, 3):
        a.salu('s_add_u32', f's{S_QOFF+k}', f's{S_QOFF}', k * 8 * ROW)

def q_load(a, vm, opt):
    for s in range(12):
        a.bload('buffer_load_dwordx4', T('v', P2_Q + 4 * s, 4), f'v{P2_QOFF}', srd(SRD_Q), f's{S_QOFF}', off=32 * s, mods=opt.qmods)
        vm.issue('q')

def stage_setup(a):
    c, g, t0, t1 = P2_T, P2_T + 1, P2_T + 2, P2_T + 3
    a.valu('v_and_b32', f'v{c}', 15, f'v{V_LANE}')
    a.valu('v_lshrrev_b32', f'v{g}', 4, f'v{V_LANE}')
    a.salu('s_and_b32', f's{S_T0}', f's{S_WAVE}', 3)
    a.salu('s_lshr_b32', f's{S_T1}', f's{S_WAVE}', 2)
    a.salu('s_lshr_b32', f's{S_T2}', f's{S_T0}', 1)
    a.salu('s_mul_i32', f's{S_T2}', f's{S_T2}', 12288)
    a.salu('s_lshl_b32', f's{S_T3}', f's{S_T1}', 9)
    a.salu('s_add_u32', f's{S_T2}', f's{S_T2}', f's{S_T3}')
    a.salu('s_and_b32', f's{S_T3}', f's{S_T0}', 1)
    a.salu('s_lshl_b32', f's{S_T3}', f's{S_T3}', 8)
    a.salu('s_add_u32', f's{S_T2}', f's{S_T2}', f's{S_T3}')
    a.valu('v_lshlrev_b32', f'v{t0}', 10, f'v{g}')
    a.valu('v_lshl_add_u32', f'v{t0}', f'v{c}', 4, f'v{t0}')
    a.valu('v_add_u32', f'v{P2_A}', f's{S_T2}', f'v{t0}')
    a.salu('s_lshl_b32', f's{S_T2}', f's{S_T1}', 11)
    a.salu('s_add_u32', f's{S_T2}', f's{S_T2}', 24576)
    a.valu('v_lshlrev_b32', f'v{t0}', 9, f'v{g}')
    a.valu('v_add_u32', f'v{t0}', f's{S_T2}', f'v{t0}')
    a.valu('v_lshlrev_b32', f'v{c}', 2, f'v{c}')
    a.valu('v_add_u32', f'v{c}', f's{S_T0}', f'v{c}')
    for ds in range(3):
        d, q, r = P2_T + 4, P2_T + 5, P2_T + 6
        a.valu('v_add_u32', f'v{d}', 64 * ds, f'v{c}')
        a.valu('v_mul_u32_u24', f'v{q}', 171, f'v{d}')
        a.valu('v_lshrrev_b32', f'v{q}', 10, f'v{q}')
        a.valu('v_mul_u32_u24', f'v{r}', 6, f'v{q}')
        a.valu('v_sub_u32', f'v{r}', f'v{d}', f'v{r}')
        a.valu('v_lshl_add_u32', f'v{P2_A+1+ds}', f'v{r}', 12, f'v{t0}')
        a.valu('v_lshl_add_u32', f'v{P2_A+1+ds}', f'v{q}', 4, f'v{P2_A+1+ds}')
    a.salu('s_mul_i32', f's{S_WSOFF}', f's{S_HEAD}', WS_HEAD)
    a.salu('s_lshl_b32', f's{S_T2}', f's{S_T0}', 11)
    a.salu('s_add_u32', f's{S_WSOFF}', f's{S_WSOFF}', f's{S_T2}')
    a.salu('s_lshl_b32', f's{S_T2}', f's{S_T1}', 10)
    a.salu('s_add_u32', f's{S_WSOFF}', f's{S_WSOFF}', f's{S_T2}')

def stage(a, vm, fused):
    for tk in range(6):
        a.bload('buffer_load_dwordx4', T('v', P2_ST + 4 * tk, 4), f'v{P2_LB}', srd(SRD_WS), f's{S_WSOFF}', mods='sc1' if fused else '')
        vm.issue(('st', tk))
        if tk < 5: a.salu('s_add_u32', f's{S_WSOFF}', f's{S_WSOFF}', 8192)
    for tk in range(6):
        vm.wait(('st', tk))
        if tk < 3:
            a.dswrite('ds_write_b128', f'v{P2_A}', T('v', P2_ST + 4 * tk, 4), off=tk * 4096)
        else:
            a.dswrite('ds_write_b128', f'v{P2_A+1+tk-3}', T('v', P2_ST + 4 * tk, 4))
    a.waitcnt(lgkm=0)
    a.barrier()

def phase2(a, vm, opt):
    MF = 'v_mfma_f32_32x32x16_bf16'
    if vm.has('q'): vm.wait('q')
    seq = [(s, mt) for s in range(12) for mt in range(2)]
    NF = 4
    def rd(i, base_off):
        a.dsread('ds_read_b128', T('v', P2_FR + 4 * (i % NF), 4), f'v{P2_LB}', off=base_off)
    def koff(i): s, mt = seq[i]; return (mt * 12 + s) * 1024
    for i in range(NF - 1): rd(i, koff(i))
    for i, (s, mt) in enumerate(seq):
        if i + NF - 1 < len(seq):
            rd(i + NF - 1, koff(i + NF - 1))
            a.waitcnt(lgkm=NF - 1)
        else:
            a.waitcnt(lgkm=len(seq) - 1 - i)
        acc = T('v', P2_S + 16 * mt, 16)
        a.mfma(MF, acc, T('v', P2_FR + 4 * (i % NF), 4), T('v', P2_Q + 4 * s, 4), '0' if s == 0 else acc)
    seq2 = [(t, s) for t in range(6) for s in range(4)]
    def voff(i): t, s = seq2[i]; return 24576 + (t * 4 + s) * 1024
    x = [f'v{P2_S + i}' for i in range(32)]
    m, t = f'v{P2_T}', f'v{P2_T+1}'
    a.valu('v_max3_f32', m, x[0], x[1], x[2])
    for i in range(3, 31, 2):
        a.valu('v_max3_f32', m, m, x[i], x[i + 1])
    a.valu('v_max_f32', m, m, x[31])
    for i in range(NF - 1): rd(i, voff(i))
    a.valu('v_mov_b32', t, m)
    a.valu('v_permlane32_swap_b32', m, t)
    a.valu('v_max_f32', m, m, t)
    c = (192 ** -0.5) * math.log2(math.e)
    import struct
    cbits = struct.unpack('<I', struct.pack('<f', c))[0]
    a.salu('s_mov_b32', f's{S_SCALE}', hex(cbits))
    a.valu('v_mul_f32', m, f's{S_SCALE}', m)
    for i in range(32):
        a.valu('v_fma_f32', x[i], x[i], f's{S_SCALE}', f'-{m}')
    for i in range(32):
        a.valu('v_exp_f32', x[i], x[i])
    l0, l1 = f'v{P2_T+2}', f'v{P2_T+3}'
    a.valu('v_add_f32', l0, x[0], x[1])
    a.valu('v_add_f32', l1, x[2], x[3])
    for i in range(4, 32, 2):
        a.valu('v_add_f32', l0, l0, x[i])
        a.valu('v_add_f32', l1, l1, x[i + 1])
    a.valu('v_add_f32', l0, l0, l1)
    a.valu('v_mov_b32', t, l0)
    a.valu('v_permlane32_swap_b32', l0, t)
    a.valu('v_add_f32', l0, l0, t)
    a.valu('v_rcp_f32', l0, l0)
    for i in range(32):
        a.valu('v_mul_f32', x[i], x[i], l0)
    for i in range(16):
        a.valu('v_cvt_pk_bf16_f32', f'v{P2_P + i}', x[2 * i], x[2 * i + 1])
    for i, (tt, s) in enumerate(seq2):
        if i + NF - 1 < len(seq2):
            rd(i + NF - 1, voff(i + NF - 1))
            a.waitcnt(lgkm=NF - 1)
        else:
            a.waitcnt(lgkm=len(seq2) - 1 - i)
        acc = T('v', P2_O + 16 * tt, 16)
        a.mfma(MF, acc, T('v', P2_P + 4 * s, 4), T('v', P2_FR + 4 * (i % NF), 4), '0' if s == 0 else acc)
    for i in range(16):
        pk = P2_PKO + 4 * (i % 6)
        for k in range(3):
            a.valu('v_cvt_pk_bf16_f32', f'v{pk + k}', f'v{P2_O + 16*(2*k) + i}', f'v{P2_O + 16*(2*k+1) + i}')
        a.bstore('buffer_store_dwordx3', T('v', pk, 3), f'v{P2_OOFF}', srd(SRD_O), f's{S_QOFF + (i >> 2)}', off=(i & 3) * ROW, mods=opt.omods)

def kdesc(name, vgpr=256, sgpr=72):
    return f'''.amdhsa_kernel {name}
  .amdhsa_next_free_vgpr {vgpr}
  .amdhsa_next_free_sgpr {sgpr}
  .amdhsa_accum_offset {(vgpr + 3) // 4 * 4}
  .amdhsa_group_segment_fixed_size 0
  .amdhsa_kernarg_size 64
  .amdhsa_user_sgpr_count 2
  .amdhsa_user_sgpr_kernarg_segment_ptr 1
  .amdhsa_system_sgpr_workgroup_id_x 1
.end_amdhsa_kernel
'''

def kstart(name):
    return f'.globl {name}\n.p2align 8\n.type {name},@function\n{name}:\n'

def gen_split(opt):
    s = HEADER
    s += '; @launch kernel=lin_p1_kernel grid=(192,1,1) block=(256,1,1) lds=65536\n'
    s += '; @launch kernel=lin_p2_kernel grid=(256,1,1) block=(512,1,1) lds=49152\n'
    s += '.amdgcn_target "amdgcn-amd-amdhsa--gfx950"\n.text\n'
    a = Asm()
    prologue(a, 192, 'L1_END')
    a.salu('s_cmp_lt_u32', f's{S_TK}', 3, nodst=True)
    a.branch('s_cbranch_scc0', 'L1_V')
    phase1(a, False, False, opt, VM(a))
    a.branch('s_branch', 'L1_END')
    a.label('L1_V')
    phase1(a, True, False, opt, VM(a))
    a.label('L1_END')
    a.other('s_endpgm')
    s += kstart('lin_p1_kernel') + a.text()
    a = Asm()
    prologue(a, 256, 'L2_END')
    vm = VM(a)
    q_setup(a)
    stage_setup(a)
    stage_first = True
    for tk in range(6):
        a.bload('buffer_load_dwordx4', T('v', P2_ST + 4 * tk, 4), f'v{P2_LB}', srd(SRD_WS), f's{S_WSOFF}')
        vm.issue(('st', tk))
        if tk < 5: a.salu('s_add_u32', f's{S_WSOFF}', f's{S_WSOFF}', 8192)
    q_load(a, vm, opt)
    for tk in range(6):
        vm.wait(('st', tk))
        if tk < 3:
            a.dswrite('ds_write_b128', f'v{P2_A}', T('v', P2_ST + 4 * tk, 4), off=tk * 4096)
        else:
            a.dswrite('ds_write_b128', f'v{P2_A+1+tk-3}', T('v', P2_ST + 4 * tk, 4))
    a.waitcnt(lgkm=0)
    a.barrier()
    phase2(a, vm, opt)
    a.label('L2_END')
    a.other('s_endpgm')
    s += kstart('lin_p2_kernel') + a.text()
    s += '.section .rodata,"a"\n.p2align 6\n' + kdesc('lin_p1_kernel') + '.p2align 6\n' + kdesc('lin_p2_kernel')
    return s

def main():
    ap = argparse.ArgumentParser()
    ap.add_argument('--mode', default='split')
    ap.add_argument('--kmods', default='')
    ap.add_argument('--qmods', default='')
    ap.add_argument('--omods', default='')
    ap.add_argument('-o', default='cdna_kernels/' + NAME + '.s')
    opt = ap.parse_args()
    if opt.mode == 'split': s = gen_split(opt)
    open(opt.o, 'w').write(s)

if __name__ == '__main__':
    main()
```

```python
import sys, math, argparse
from asmlib import Asm, R, T

NAME = 'standalone__low_rank_proj_linformer__prompt'
HEADER = open('cdna_kernels/' + NAME + '.s.ref').read().split('; Override launch')[0]

TENSOR_BYTES = 25165824
HEAD_BYTES = 786432
ROW = 384
WS_HEAD = 49152

S_Q, S_K, S_V, S_E, S_F, S_O, S_DBG, S_WS = 4, 6, 8, 10, 12, 14, 16, 18
SRD_Q, SRD_KV, SRD_EF, SRD_O, SRD_WS, SRD_DBG = 20, 24, 28, 32, 36, 40
S_WAVE, S_HEAD, S_QB, S_TK = 44, 45, 46, 47
S_PLO, S_PHI = 48, 49
S_KOFF, S_EOFF = 50, 51
S_T0, S_T1, S_T2, S_T3 = 52, 53, 54, 55
S_QOFF = 56
S_WSOFF = 60
S_DS = 61
S_CNT = 62
S_SCALE = 63
S_KB, S_EB, S_P = 64, 65, 66
S_LB, S_PE = 67, 68

def srd(n): return f's[{n}:{n+3}]'

class VM:
    def __init__(self, a): self.a = a; self.q = []
    def issue(self, tag): self.q.append(tag)
    def wait(self, tag):
        idx = max(i for i, t in enumerate(self.q) if t == tag)
        n = len(self.q) - 1 - idx
        self.a.waitcnt(vm=n)
        self.q = self.q[idx + 1:]
    def has(self, tag): return tag in self.q

def build_srd(a, d, p, nbytes):
    a.salu('s_mov_b32', f's{d}', f's{p}')
    a.salu('s_mov_b32', f's{d+1}', f's{p+1}')
    a.salu('s_mov_b32', f's{d+2}', hex(nbytes))
    a.salu('s_mov_b32', f's{d+3}', '0x00020000')

def prologue(a, nwg, end):
    a.salu('s_cmp_ge_u32', 's2', nwg, nodst=True)
    a.branch('s_cbranch_scc1', end)
    a.smem('s_load_dwordx16 s[4:19], s[0:1], 0', R('s', 4, 16))
    a.valu('v_lshrrev_b32', 'v2', 6, 'v0')
    a.valu('v_and_b32', 'v1', 63, 'v0')
    a.valu('v_readfirstlane_b32', f's{S_WAVE}', 'v2')
    a.salu('s_and_b32', f's{S_T0}', 's2', 7)
    a.salu('s_lshr_b32', f's{S_T1}', 's2', 3)
    a.salu('s_and_b32', f's{S_T2}', f's{S_T1}', 3)
    a.salu('s_lshl_b32', f's{S_HEAD}', f's{S_T0}', 2)
    a.salu('s_add_u32', f's{S_HEAD}', f's{S_HEAD}', f's{S_T2}')
    a.salu('s_lshr_b32', f's{S_TK}', f's{S_T1}', 2)
    a.salu('s_mov_b32', f's{S_QB}', f's{S_TK}')
    a.salu('s_mov_b32', f's{S_PLO}', '0x05040100')
    a.salu('s_mov_b32', f's{S_PHI}', '0x07060302')
    a.waitcnt(lgkm=0)
    build_srd(a, SRD_Q, S_Q, TENSOR_BYTES)
    build_srd(a, SRD_O, S_O, TENSOR_BYTES)
    build_srd(a, SRD_WS, S_WS, 32 * WS_HEAD)
    build_srd(a, SRD_DBG, S_DBG, 256)
    a.salu('s_cmp_lt_u32', f's{S_TK}', 3, nodst=True)
    a.salu('s_cselect_b32', f's{SRD_KV}', f's{S_K}', f's{S_V}')
    a.salu('s_cselect_b32', f's{SRD_KV+1}', f's{S_K+1}', f's{S_V+1}')
    a.salu('s_cselect_b32', f's{SRD_EF}', f's{S_E}', f's{S_F}')
    a.salu('s_cselect_b32', f's{SRD_EF+1}', f's{S_E+1}', f's{S_F+1}')
    a.salu('s_cselect_b32', f's{S_T0}', 0, 3)
    a.salu('s_sub_u32', f's{S_DS}', f's{S_TK}', f's{S_T0}')
    a.salu('s_mov_b32', f's{SRD_KV+2}', hex(TENSOR_BYTES))
    a.salu('s_mov_b32', f's{SRD_KV+3}', '0x00020000')
    a.salu('s_mov_b32', f's{SRD_EF+2}', hex(262144))
    a.salu('s_mov_b32', f's{SRD_EF+3}', '0x00020000')

V_LANE = 1
V_KOFF = 3
V_EOFF = 4
V_TMP = 8
V_F = 12
V_ACC = 28
V_BUF = 92
NBUF = 5
NCHUNK = 16

def phase1(a, isV, fused, opt, vm, after_last_issue=None, after_store=None):
    sfx = 'V' if isV else 'K'
    a.valu('v_and_b32', f'v{V_TMP}', 15, f'v{V_LANE}')
    a.valu('v_lshrrev_b32', f'v{V_TMP+1}', 4, f'v{V_LANE}')
    a.valu('v_mul_u32_u24', f'v{V_KOFF}', 8 * ROW, f'v{V_TMP+1}')
    a.valu('v_lshl_add_u32', f'v{V_KOFF}', f'v{V_TMP}', 3, f'v{V_KOFF}')
    if not isV:
        a.valu('v_lshlrev_b32', f'v{V_EOFF}', 12, f'v{V_TMP}')
        tile_rows = [0, 16, 32, 48]
    else:
        a.valu('v_and_b32', f'v{V_TMP+2}', 7, f'v{V_TMP}')
        a.valu('v_lshrrev_b32', f'v{V_TMP+3}', 3, f'v{V_TMP}')
        a.valu('v_lshl_add_u32', f'v{V_TMP+2}', f'v{V_TMP+3}', 4, f'v{V_TMP+2}')
        a.valu('v_lshlrev_b32', f'v{V_EOFF}', 12, f'v{V_TMP+2}')
        tile_rows = [0, 8, 32, 40]
    a.valu('v_lshl_add_u32', f'v{V_EOFF}', f'v{V_TMP+1}', 4, f'v{V_EOFF}')
    for t in (1, 2, 3):
        a.valu('v_add_u32', f'v{V_EOFF+t}', hex(tile_rows[t] * 4096), f'v{V_EOFF}')
    a.salu('s_mul_i32', f's{S_KB}', f's{S_HEAD}', HEAD_BYTES)
    a.salu('s_lshl_b32', f's{S_T0}', f's{S_DS}', 7)
    a.salu('s_add_u32', f's{S_KB}', f's{S_KB}', f's{S_T0}')
    a.salu('s_mul_i32', f's{S_T0}', f's{S_WAVE}', 64 * ROW)
    a.salu('s_add_u32', f's{S_KB}', f's{S_KB}', f's{S_T0}')
    a.salu('s_lshl_b32', f's{S_EB}', f's{S_WAVE}', 7)
    if opt.rot:
        a.salu('s_and_b32', f's{S_P}', f's{S_HEAD}', 3)
        a.salu('s_lshl_b32', f's{S_P}', f's{S_P}', 1)
        if isV: a.salu('s_add_u32', f's{S_P}', f's{S_P}', 1)
    else:
        a.salu('s_mov_b32', f's{S_P}', 0)
    kmods = opt.kmods
    def issue(k):
        b = V_BUF + (k % NBUF) * 32
        if k & 1 == 0:
            a.salu('s_mul_i32', f's{S_KOFF}', f's{S_P}', 256 * ROW)
            a.salu('s_add_u32', f's{S_KOFF}', f's{S_KOFF}', f's{S_KB}')
            a.salu('s_lshl_b32', f's{S_EOFF}', f's{S_P}', 9)
            a.salu('s_add_u32', f's{S_EOFF}', f's{S_EOFF}', f's{S_EB}')
            a.salu('s_add_u32', f's{S_P}', f's{S_P}', 1)
            a.salu('s_and_b32', f's{S_P}', f's{S_P}', 7)
        else:
            a.salu('s_add_u32', f's{S_KOFF}', f's{S_KOFF}', 32 * ROW)
            a.salu('s_add_u32', f's{S_EOFF}', f's{S_EOFF}', 64)
        for i in range(8):
            if opt.nok: continue
            a.bload('buffer_load_dwordx2', T('v', b + 2 * i, 2), f'v{V_KOFF}', srd(SRD_KV), f's{S_KOFF}', off=i * ROW, mods=kmods)
            vm.issue(('c', k))
        for t in range(4):
            if opt.noe: continue
            a.bload('buffer_load_dwordx4', T('v', b + 16 + 4 * t, 4), f'v{V_EOFF+t}', srd(SRD_EF), f's{S_EOFF}')
            vm.issue(('c', k))
    for k in range(NBUF): issue(k)
    for k in range(NCHUNK):
        b = V_BUF + (k % NBUF) * 32
        vm.wait(('c', k))
        for j in range(4):
            for m in range(4):
                s1 = b + 2 * (2 * m) + (j >> 1)
                s0 = b + 2 * (2 * m + 1) + (j >> 1)
                a.valu('v_perm_b32', f'v{V_F + 4*j + m}', f'v{s0}', f'v{s1}', f's{S_PHI if j & 1 else S_PLO}')
        for j in range(4):
            for t in range(4):
                o, z = (j, t) if isV else (t, j)
                acc = T('v', V_ACC + (o * 4 + z) * 4, 4)
                fk = T('v', V_F + 4 * j, 4)
                fe = T('v', b + 16 + 4 * t, 4)
                A, B = (fe, fk) if isV else (fk, fe)
                a.mfma('v_mfma_f32_16x16x32_bf16', acc, A, B, '0' if k == 0 else acc)
        if k + NBUF < NCHUNK:
            issue(k + NBUF)
            if k + NBUF == NCHUNK - 1 and after_last_issue: after_last_issue()
    a.salu('s_lshl_b32', f's{S_T0}', f's{S_WAVE}', 12)
    a.valu('v_lshl_add_u32', f'v{V_TMP}', f'v{V_LANE}', 4, f's{S_T0}')
    a.salu('s_lshl_b32', f's{S_T1}', f's{S_WAVE}', 14)
    a.valu('v_lshl_add_u32', f'v{V_TMP+1}', f'v{V_LANE}', 4, f's{S_T1}')
    for o in range(4):
        for z in range(4):
            a.dswrite('ds_write_b128', f'v{V_TMP}', T('v', V_ACC + (o * 4 + z) * 4, 4), off=o * 16384 + z * 1024)
    a.waitcnt(lgkm=0)
    a.barrier()
    RB = V_BUF
    for src in range(4):
        for z in range(4):
            a.dsread('ds_read_b128', T('v', RB + (src * 4 + z) * 4, 4), f'v{V_TMP+1}', off=src * 4096 + z * 1024)
    a.salu('s_mul_i32', f's{S_WSOFF}', f's{S_HEAD}', WS_HEAD)
    a.salu('s_lshl_b32', f's{S_T0}', f's{S_TK}', 13)
    a.salu('s_add_u32', f's{S_WSOFF}', f's{S_WSOFF}', f's{S_T0}')
    a.salu('s_lshl_b32', f's{S_T0}', f's{S_WAVE}', 11)
    a.salu('s_add_u32', f's{S_WSOFF}', f's{S_WSOFF}', f's{S_T0}')
    a.valu('v_lshlrev_b32', f'v{V_TMP+2}', 4, f'v{V_LANE}')
    a.waitcnt(lgkm=8)
    for e in range(16):
        a.valu('v_add_f32', f'v{RB+e}', f'v{RB+e}', f'v{RB+16+e}')
    a.waitcnt(lgkm=0)
    for e in range(16):
        a.valu('v_add_f32', f'v{RB+32+e}', f'v{RB+32+e}', f'v{RB+48+e}')
    for e in range(16):
        a.valu('v_add_f32', f'v{RB+e}', f'v{RB+e}', f'v{RB+32+e}')
    def sm(z, i): return f'v{RB + z*4 + i}'
    PK = V_F
    for u in range(2):
        if not isV:
            pairs = [(sm(0, 2*u), sm(1, 2*u)), (sm(2, 2*u), sm(3, 2*u)), (sm(0, 2*u+1), sm(1, 2*u+1)), (sm(2, 2*u+1), sm(3, 2*u+1))]
        else:
            pairs = [(sm(2*u, 0), sm(2*u, 1)), (sm(2*u, 2), sm(2*u, 3)), (sm(2*u+1, 0), sm(2*u+1, 1)), (sm(2*u+1, 2), sm(2*u+1, 3))]
        for m, (lo, hi) in enumerate(pairs):
            a.valu('v_cvt_pk_bf16_f32', f'v{PK + 4*u + m}', lo, hi)
    for u in range(2):
        a.bstore('buffer_store_dwordx4', T('v', PK + 4 * u, 4), f'v{V_TMP+2}', srd(SRD_WS), f's{S_WSOFF}', off=u * 1024,
                 mods='sc1' if fused else '')
        vm.issue('wsst')

V2_EOFF = 4
V2_ERD = 12
V2_TMP = 14
V2_F = 20
V2_EF = 36
V2_ACC = 52
V2_BUF = 116

def phase1v2(a, isV, fused, opt, vm, lds_base=0, after_last_issue=None):
    NS = opt.ns; NB = opt.nbuf
    AREA = NS * 8192
    t0, t1, t2, t3 = V2_TMP, V2_TMP + 1, V2_TMP + 2, V2_TMP + 3
    a.valu('v_and_b32', f'v{t0}', 15, f'v{V_LANE}')
    a.valu('v_lshrrev_b32', f'v{t1}', 4, f'v{V_LANE}')
    a.valu('v_mul_u32_u24', f'v{V_KOFF}', 8 * ROW, f'v{t1}')
    a.valu('v_lshl_add_u32', f'v{V_KOFF}', f'v{t0}', 3, f'v{V_KOFF}')
    a.salu('s_mul_i32', f's{S_KB}', f's{S_HEAD}', HEAD_BYTES)
    a.salu('s_lshl_b32', f's{S_T0}', f's{S_DS}', 7)
    a.salu('s_add_u32', f's{S_KB}', f's{S_KB}', f's{S_T0}')
    a.salu('s_mul_i32', f's{S_T0}', f's{S_WAVE}', 64 * ROW)
    a.salu('s_add_u32', f's{S_KB}', f's{S_KB}', f's{S_T0}')
    a.salu('s_lshl_b32', f's{S_EB}', f's{S_WAVE}', 7)
    a.salu('s_mul_i32', f's{S_LB}', f's{S_WAVE}', AREA)
    if lds_base: a.salu('s_add_u32', f's{S_LB}', f's{S_LB}', lds_base)
    if opt.rot:
        a.salu('s_and_b32', f's{S_P}', f's{S_HEAD}', 3)
        a.salu('s_lshl_b32', f's{S_P}', f's{S_P}', 1)
        if isV: a.salu('s_add_u32', f's{S_P}', f's{S_P}', 1)
    else:
        a.salu('s_mov_b32', f's{S_P}', 0)
    a.salu('s_mov_b32', f's{S_PE}', f's{S_P}')
    a.valu('v_and_b32', f'v{t2}', 7, f'v{V_LANE}')
    a.valu('v_xor_b32', f'v{t2}', f'v{t2}', f'v{t1}')
    a.valu('v_lshrrev_b32', f'v{t3}', 3, f'v{V_LANE}')
    a.valu('v_lshlrev_b32', f'v{t3}', 12, f'v{t3}')
    a.valu('v_lshl_add_u32', f'v{V2_EOFF}', f'v{t2}', 4, f'v{t3}')
    a.valu('v_xor_b32', f'v{V2_EOFF+1}', 64, f'v{V2_EOFF}')
    def rowbase(j): return (32 * (j >> 2) + 8 * ((j >> 1) & 1) + 16 * (j & 1)) if isV else 8 * j
    for j in range(7, 0, -1):
        a.valu('v_add_u32', f'v{V2_EOFF+j}', hex(rowbase(j) * 4096 - (j & 3) * 1024), f'v{V2_EOFF + (j & 1)}')
    a.valu('v_lshrrev_b32', f'v{t2}', 1, f'v{t0}')
    a.valu('v_xor_b32', f'v{t2}', f'v{t2}', f'v{t1}')
    a.valu('v_lshlrev_b32', f'v{t2}', 4, f'v{t2}')
    a.valu('v_lshl_add_u32', f'v{t2}', f'v{t0}', 7, f'v{t2}')
    a.valu('v_add_u32', f'v{V2_ERD}', f's{S_LB}', f'v{t2}')
    a.valu('v_xor_b32', f'v{V2_ERD+1}', 64, f'v{V2_ERD}')
    kmods = opt.kmods
    st = {'k': 0, 'e': 0}
    def issueK():
        k = st['k']; st['k'] += 1
        b = V2_BUF + (k % NB) * 16
        if k & 1 == 0:
            a.salu('s_mul_i32', f's{S_KOFF}', f's{S_P}', 256 * ROW)
            a.salu('s_add_u32', f's{S_KOFF}', f's{S_KOFF}', f's{S_KB}')
            a.salu('s_add_u32', f's{S_P}', f's{S_P}', 1)
            a.salu('s_and_b32', f's{S_P}', f's{S_P}', 7)
        else:
            a.salu('s_add_u32', f's{S_KOFF}', f's{S_KOFF}', 32 * ROW)
        for i in range(8):
            if opt.nok: continue
            a.bload('buffer_load_dwordx2', T('v', b + 2 * i, 2), f'v{V_KOFF}', srd(SRD_KV), f's{S_KOFF}', off=i * ROW, mods=kmods)
            vm.issue(('K', k))
    def issueE():
        p = st['e']; st['e'] += 1
        a.salu('s_lshl_b32', f's{S_EOFF}', f's{S_PE}', 9)
        a.salu('s_add_u32', f's{S_EOFF}', f's{S_EOFF}', f's{S_EB}')
        a.salu('s_add_u32', f's{S_PE}', f's{S_PE}', 1)
        a.salu('s_and_b32', f's{S_PE}', f's{S_PE}', 7)
        for j in range(8):
            if opt.noe: continue
            if j & 3 == 0:
                a.salu('s_add_u32', 'm0', f's{S_LB}', (p % NS) * 8192 + j * 1024)
            a.bload_lds('buffer_load_dwordx4', f'v{V2_EOFF+j}', srd(SRD_EF), f's{S_EOFF}', off=(j & 3) * 1024, mods=opt.emods)
            vm.issue(('E', p))
    def pump(done):
        while True:
            p, k = st['e'], st['k']
            canE = p < 8 and (p < NS or done >= 2 * (p - NS) + 2) and len(vm.q) + 8 <= opt.maxvm
            canK = k < NCHUNK and (k < NB or done >= k - NB + 1) and len(vm.q) + 8 <= opt.maxvm
            if canE and (2 * p <= k or not canK): issueE()
            elif canK:
                issueK()
                if st['k'] == NCHUNK and after_last_issue: after_last_issue()
            else: break
    pump(0)
    for k in range(NCHUNK):
        b = V2_BUF + (k % NB) * 16
        p, hf = k >> 1, k & 1
        tags = [t for t in (('K', k), ('E', p)) if vm.has(t)]
        if tags:
            tg = max(tags, key=lambda t: max(i for i, x in enumerate(vm.q) if x == t))
            vm.wait(tg)
        for t in range(4):
            a.dsread('ds_read_b128', T('v', V2_EF + 4 * t, 4), f'v{V2_ERD+hf}', off=(p % NS) * 8192 + t * 2048)
        for j in range(4):
            for m in range(4):
                s1 = b + 2 * (2 * m) + (j >> 1)
                s0 = b + 2 * (2 * m + 1) + (j >> 1)
                a.valu('v_perm_b32', f'v{V2_F + 4*j + m}', f'v{s0}', f'v{s1}', f's{S_PHI if j & 1 else S_PLO}')
        a.waitcnt(lgkm=0)
        pump(k + 1)
        for j in range(4):
            for t in range(4):
                o, z = (j, t) if isV else (t, j)
                acc = T('v', V2_ACC + (o * 4 + z) * 4, 4)
                fk = T('v', V2_F + 4 * j, 4)
                fe = T('v', V2_EF + 4 * t, 4)
                A, B = (fe, fk) if isV else (fk, fe)
                a.mfma('v_mfma_f32_16x16x32_bf16', acc, A, B, '0' if k == 0 else acc)
    a.valu('v_lshl_add_u32', f'v{t0}', f'v{V_LANE}', 4, f's{S_LB}')
    a.salu('s_lshl_b32', f's{S_T1}', f's{S_WAVE}', 12)
    if lds_base: a.salu('s_add_u32', f's{S_T1}', f's{S_T1}', lds_base)
    a.valu('v_lshl_add_u32', f'v{t1}', f'v{V_LANE}', 4, f's{S_T1}')
    for o in range(4):
        for z in range(4):
            a.dswrite('ds_write_b128', f'v{t0}', T('v', V2_ACC + (o * 4 + z) * 4, 4), off=o * 4096 + z * 1024)
    a.waitcnt(lgkm=0)
    a.barrier()
    RB = V2_BUF
    if 3 * AREA + 3 * 1024 >= 65536:
        a.valu('v_add_u32', f'v{t3}', 2 * AREA, f'v{t1}')
    for src in range(4):
        for z in range(4):
            if src * AREA + z * 1024 < 65536:
                a.dsread('ds_read_b128', T('v', RB + (src * 4 + z) * 4, 4), f'v{t1}', off=src * AREA + z * 1024)
            else:
                a.dsread('ds_read_b128', T('v', RB + (src * 4 + z) * 4, 4), f'v{t3}', off=(src - 2) * AREA + z * 1024)
    a.salu('s_mul_i32', f's{S_WSOFF}', f's{S_HEAD}', WS_HEAD)
    a.salu('s_lshl_b32', f's{S_T0}', f's{S_TK}', 13)
    a.salu('s_add_u32', f's{S_WSOFF}', f's{S_WSOFF}', f's{S_T0}')
    a.salu('s_lshl_b32', f's{S_T0}', f's{S_WAVE}', 11)
    a.salu('s_add_u32', f's{S_WSOFF}', f's{S_WSOFF}', f's{S_T0}')
    a.valu('v_lshlrev_b32', f'v{t2}', 4, f'v{V_LANE}')
    a.waitcnt(lgkm=8)
    for e in range(16):
        a.valu('v_add_f32', f'v{RB+e}', f'v{RB+e}', f'v{RB+16+e}')
    a.waitcnt(lgkm=0)
    for e in range(16):
        a.valu('v_add_f32', f'v{RB+32+e}', f'v{RB+32+e}', f'v{RB+48+e}')
    for e in range(16):
        a.valu('v_add_f32', f'v{RB+e}', f'v{RB+e}', f'v{RB+32+e}')
    def sm(z, i): return f'v{RB + z*4 + i}'
    PK = V2_F
    for u in range(2):
        if not isV:
            pairs = [(sm(0, 2*u), sm(1, 2*u)), (sm(2, 2*u), sm(3, 2*u)), (sm(0, 2*u+1), sm(1, 2*u+1)), (sm(2, 2*u+1), sm(3, 2*u+1))]
        else:
            pairs = [(sm(2*u, 0), sm(2*u, 1)), (sm(2*u, 2), sm(2*u, 3)), (sm(2*u+1, 0), sm(2*u+1, 1)), (sm(2*u+1, 2), sm(2*u+1, 3))]
        for m, (lo, hi) in enumerate(pairs):
            a.valu('v_cvt_pk_bf16_f32', f'v{PK + 4*u + m}', lo, hi)
    for u in range(2):
        a.bstore('buffer_store_dwordx4', T('v', PK + 4 * u, 4), f'v{t2}', srd(SRD_WS), f's{S_WSOFF}', off=u * 1024,
                 mods='sc1' if fused else '')
        vm.issue('wsst')

P2_Q = 160
P2_QOFF = 208
P2_OOFF = 209
P2_LB = 210
P2_A = 211
P2_T = 216
P2_ST = 224
P2_S = 12
P2_P = 44
P2_FR = 60
P2_O = 64 + 12
P2_PKO = 224

def q_setup(a):
    a.valu('v_and_b32', f'v{P2_T}', 31, f'v{V_LANE}')
    a.valu('v_lshrrev_b32', f'v{P2_T+1}', 5, f'v{V_LANE}')
    a.valu('v_mul_u32_u24', f'v{P2_QOFF}', ROW, f'v{P2_T}')
    a.valu('v_lshl_add_u32', f'v{P2_QOFF}', f'v{P2_T+1}', 4, f'v{P2_QOFF}')
    a.valu('v_mul_u32_u24', f'v{P2_OOFF}', 12, f'v{P2_T}')
    a.valu('v_mul_u32_u24', f'v{P2_T+2}', 4 * ROW, f'v{P2_T+1}')
    a.valu('v_add_u32', f'v{P2_OOFF}', f'v{P2_OOFF}', f'v{P2_T+2}')
    a.valu('v_lshlrev_b32', f'v{P2_LB}', 4, f'v{V_LANE}')
    a.salu('s_mul_i32', f's{S_QOFF}', f's{S_HEAD}', HEAD_BYTES)
    a.salu('s_lshl_b32', f's{S_T0}', f's{S_QB}', 3)
    a.salu('s_add_u32', f's{S_T0}', f's{S_T0}', f's{S_WAVE}')
    a.salu('s_mul_i32', f's{S_T0}', f's{S_T0}', 32 * ROW)
    a.salu('s_add_u32', f's{S_QOFF}', f's{S_QOFF}', f's{S_T0}')
    for k in (1, 2, 3):
        a.salu('s_add_u32', f's{S_QOFF+k}', f's{S_QOFF}', k * 8 * ROW)

def q_load(a, vm, opt):
    for s in range(12):
        a.bload('buffer_load_dwordx4', T('v', P2_Q + 4 * s, 4), f'v{P2_QOFF}', srd(SRD_Q), f's{S_QOFF}', off=32 * s, mods=opt.qmods)
        vm.issue('q')

def stage_setup(a):
    c, g, t0, t1 = P2_T, P2_T + 1, P2_T + 2, P2_T + 3
    a.valu('v_and_b32', f'v{c}', 15, f'v{V_LANE}')
    a.valu('v_lshrrev_b32', f'v{g}', 4, f'v{V_LANE}')
    a.salu('s_and_b32', f's{S_T0}', f's{S_WAVE}', 3)
    a.salu('s_lshr_b32', f's{S_T1}', f's{S_WAVE}', 2)
    a.salu('s_lshr_b32', f's{S_T2}', f's{S_T0}', 1)
    a.salu('s_mul_i32', f's{S_T2}', f's{S_T2}', 12288)
    a.salu('s_lshl_b32', f's{S_T3}', f's{S_T1}', 9)
    a.salu('s_add_u32', f's{S_T2}', f's{S_T2}', f's{S_T3}')
    a.salu('s_and_b32', f's{S_T3}', f's{S_T0}', 1)
    a.salu('s_lshl_b32', f's{S_T3}', f's{S_T3}', 8)
    a.salu('s_add_u32', f's{S_T2}', f's{S_T2}', f's{S_T3}')
    a.valu('v_lshlrev_b32', f'v{t0}', 10, f'v{g}')
    a.valu('v_lshl_add_u32', f'v{t0}', f'v{c}', 4, f'v{t0}')
    a.valu('v_add_u32', f'v{P2_A}', f's{S_T2}', f'v{t0}')
    a.salu('s_lshl_b32', f's{S_T2}', f's{S_T1}', 11)
    a.salu('s_add_u32', f's{S_T2}', f's{S_T2}', 24576)
    a.valu('v_lshlrev_b32', f'v{t0}', 9, f'v{g}')
    a.valu('v_add_u32', f'v{t0}', f's{S_T2}', f'v{t0}')
    a.valu('v_lshlrev_b32', f'v{c}', 2, f'v{c}')
    a.valu('v_add_u32', f'v{c}', f's{S_T0}', f'v{c}')
    for ds in range(3):
        d, q, r = P2_T + 4, P2_T + 5, P2_T + 6
        a.valu('v_add_u32', f'v{d}', 64 * ds, f'v{c}')
        a.valu('v_mul_u32_u24', f'v{q}', 171, f'v{d}')
        a.valu('v_lshrrev_b32', f'v{q}', 10, f'v{q}')
        a.valu('v_mul_u32_u24', f'v{r}', 6, f'v{q}')
        a.valu('v_sub_u32', f'v{r}', f'v{d}', f'v{r}')
        a.valu('v_lshl_add_u32', f'v{P2_A+1+ds}', f'v{r}', 12, f'v{t0}')
        a.valu('v_lshl_add_u32', f'v{P2_A+1+ds}', f'v{q}', 4, f'v{P2_A+1+ds}')
    a.salu('s_mul_i32', f's{S_WSOFF}', f's{S_HEAD}', WS_HEAD)
    a.salu('s_lshl_b32', f's{S_T2}', f's{S_T0}', 11)
    a.salu('s_add_u32', f's{S_WSOFF}', f's{S_WSOFF}', f's{S_T2}')
    a.salu('s_lshl_b32', f's{S_T2}', f's{S_T1}', 10)
    a.salu('s_add_u32', f's{S_WSOFF}', f's{S_WSOFF}', f's{S_T2}')

def stage(a, vm, fused):
    for tk in range(6):
        a.bload('buffer_load_dwordx4', T('v', P2_ST + 4 * tk, 4), f'v{P2_LB}', srd(SRD_WS), f's{S_WSOFF}', mods='sc1' if fused else '')
        vm.issue(('st', tk))
        if tk < 5: a.salu('s_add_u32', f's{S_WSOFF}', f's{S_WSOFF}', 8192)
    for tk in range(6):
        vm.wait(('st', tk))
        if tk < 3:
            a.dswrite('ds_write_b128', f'v{P2_A}', T('v', P2_ST + 4 * tk, 4), off=tk * 4096)
        else:
            a.dswrite('ds_write_b128', f'v{P2_A+1+tk-3}', T('v', P2_ST + 4 * tk, 4))
    a.waitcnt(lgkm=0)
    a.barrier()

def phase2(a, vm, opt):
    MF = 'v_mfma_f32_32x32x16_bf16'
    if vm.has('q'): vm.wait('q')
    seq = [(s, mt) for s in range(12) for mt in range(2)]
    NF = 4
    def rd(i, base_off):
        a.dsread('ds_read_b128', T('v', P2_FR + 4 * (i % NF), 4), f'v{P2_LB}', off=base_off)
    def koff(i): s, mt = seq[i]; return (mt * 12 + s) * 1024
    for i in range(NF - 1): rd(i, koff(i))
    for i, (s, mt) in enumerate(seq):
        if i + NF - 1 < len(seq):
            rd(i + NF - 1, koff(i + NF - 1))
            a.waitcnt(lgkm=NF - 1)
        else:
            a.waitcnt(lgkm=len(seq) - 1 - i)
        acc = T('v', P2_S + 16 * mt, 16)
        a.mfma(MF, acc, T('v', P2_FR + 4 * (i % NF), 4), T('v', P2_Q + 4 * s, 4), '0' if s == 0 else acc)
    seq2 = [(t, s) for t in range(6) for s in range(4)]
    def voff(i): t, s = seq2[i]; return 24576 + (t * 4 + s) * 1024
    x = [f'v{P2_S + i}' for i in range(32)]
    m, t = f'v{P2_T}', f'v{P2_T+1}'
    a.valu('v_max3_f32', m, x[0], x[1], x[2])
    for i in range(3, 31, 2):
        a.valu('v_max3_f32', m, m, x[i], x[i + 1])
    a.valu('v_max_f32', m, m, x[31])
    for i in range(NF - 1): rd(i, voff(i))
    a.valu('v_mov_b32', t, m)
    a.valu('v_permlane32_swap_b32', m, t)
    a.valu('v_max_f32', m, m, t)
    c = (192 ** -0.5) * math.log2(math.e)
    import struct
    cbits = struct.unpack('<I', struct.pack('<f', c))[0]
    a.salu('s_mov_b32', f's{S_SCALE}', hex(cbits))
    a.valu('v_mul_f32', m, f's{S_SCALE}', m)
    for i in range(32):
        a.valu('v_fma_f32', x[i], x[i], f's{S_SCALE}', f'-{m}')
    for i in range(32):
        a.valu('v_exp_f32', x[i], x[i])
    l0, l1 = f'v{P2_T+2}', f'v{P2_T+3}'
    a.valu('v_add_f32', l0, x[0], x[1])
    a.valu('v_add_f32', l1, x[2], x[3])
    for i in range(4, 32, 2):
        a.valu('v_add_f32', l0, l0, x[i])
        a.valu('v_add_f32', l1, l1, x[i + 1])
    a.valu('v_add_f32', l0, l0, l1)
    a.valu('v_mov_b32', t, l0)
    a.valu('v_permlane32_swap_b32', l0, t)
    a.valu('v_add_f32', l0, l0, t)
    a.valu('v_rcp_f32', l0, l0)
    for i in range(32):
        a.valu('v_mul_f32', x[i], x[i], l0)
    for i in range(16):
        a.valu('v_cvt_pk_bf16_f32', f'v{P2_P + i}', x[2 * i], x[2 * i + 1])
    for i, (tt, s) in enumerate(seq2):
        if i + NF - 1 < len(seq2):
            rd(i + NF - 1, voff(i + NF - 1))
            a.waitcnt(lgkm=NF - 1)
        else:
            a.waitcnt(lgkm=len(seq2) - 1 - i)
        acc = T('v', P2_O + 16 * tt, 16)
        a.mfma(MF, acc, T('v', P2_P + 4 * s, 4), T('v', P2_FR + 4 * (i % NF), 4), '0' if s == 0 else acc)
    for i in range(16):
        pk = P2_PKO + 4 * (i % 6)
        for k in range(3):
            a.valu('v_cvt_pk_bf16_f32', f'v{pk + k}', f'v{P2_O + 16*(2*k) + i}', f'v{P2_O + 16*(2*k+1) + i}')
        a.bstore('buffer_store_dwordx3', T('v', pk, 3), f'v{P2_OOFF}', srd(SRD_O), f's{S_QOFF + (i >> 2)}', off=(i & 3) * ROW, mods=opt.omods)

def kdesc(name, vgpr=256, sgpr=72):
    return f'''.amdhsa_kernel {name}
  .amdhsa_next_free_vgpr {vgpr}
  .amdhsa_next_free_sgpr {sgpr}
  .amdhsa_accum_offset {(vgpr + 3) // 4 * 4}
  .amdhsa_group_segment_fixed_size 0
  .amdhsa_kernarg_size 64
  .amdhsa_user_sgpr_count 2
  .amdhsa_user_sgpr_kernarg_segment_ptr 1
  .amdhsa_system_sgpr_workgroup_id_x 1
.end_amdhsa_kernel
'''

def kstart(name):
    return f'.globl {name}\n.p2align 8\n.type {name},@function\n{name}:\n'

def gen_split(opt):
    s = HEADER
    lds1 = 65536 if opt.p1 == 1 else 4 * opt.ns * 8192
    s += f'; @launch kernel=lin_p1_kernel grid=(192,1,1) block=(256,1,1) lds={lds1}\n'
    P1 = phase1 if opt.p1 == 1 else phase1v2
    s += '; @launch kernel=lin_p2_kernel grid=(256,1,1) block=(512,1,1) lds=49152\n'
    s += '.amdgcn_target "amdgcn-amd-amdhsa--gfx950"\n.text\n'
    a = Asm()
    prologue(a, 192, 'L1_END')
    a.salu('s_cmp_lt_u32', f's{S_TK}', 3, nodst=True)
    a.branch('s_cbranch_scc0', 'L1_V')
    P1(a, False, False, opt, VM(a))
    a.branch('s_branch', 'L1_END')
    a.label('L1_V')
    P1(a, True, False, opt, VM(a))
    a.label('L1_END')
    a.other('s_endpgm')
    s += kstart('lin_p1_kernel') + a.text()
    a = Asm()
    prologue(a, 256, 'L2_END')
    vm = VM(a)
    q_setup(a)
    stage_setup(a)
    stage_first = True
    for tk in range(6):
        a.bload('buffer_load_dwordx4', T('v', P2_ST + 4 * tk, 4), f'v{P2_LB}', srd(SRD_WS), f's{S_WSOFF}')
        vm.issue(('st', tk))
        if tk < 5: a.salu('s_add_u32', f's{S_WSOFF}', f's{S_WSOFF}', 8192)
    q_load(a, vm, opt)
    for tk in range(6):
        vm.wait(('st', tk))
        if tk < 3:
            a.dswrite('ds_write_b128', f'v{P2_A}', T('v', P2_ST + 4 * tk, 4), off=tk * 4096)
        else:
            a.dswrite('ds_write_b128', f'v{P2_A+1+tk-3}', T('v', P2_ST + 4 * tk, 4))
    a.waitcnt(lgkm=0)
    a.barrier()
    phase2(a, vm, opt)
    a.label('L2_END')
    a.other('s_endpgm')
    s += kstart('lin_p2_kernel') + a.text()
    s += '.section .rodata,"a"\n.p2align 6\n' + kdesc('lin_p1_kernel') + '.p2align 6\n' + kdesc('lin_p2_kernel')
    return s

def main():
    ap = argparse.ArgumentParser()
    ap.add_argument('--mode', default='split')
    ap.add_argument('--kmods', default='')
    ap.add_argument('--emods', default='')
    ap.add_argument('--p1', type=int, default=2)
    ap.add_argument('--ns', type=int, default=3)
    ap.add_argument('--nbuf', type=int, default=6)
    ap.add_argument('--maxvm', type=int, default=63)
    ap.add_argument('--rot', type=int, default=1)
    ap.add_argument('--nok', type=int, default=0)
    ap.add_argument('--noe', type=int, default=0)
    ap.add_argument('--qmods', default='')
    ap.add_argument('--omods', default='')
    ap.add_argument('-o', default='cdna_kernels/' + NAME + '.s')
    opt = ap.parse_args()
    if opt.mode == 'split': s = gen_split(opt)
    open(opt.o, 'w').write(s)

if __name__ == '__main__':
    main()
```

```python
import sys, math, argparse, struct, re
from asmlib import Asm, R, T

NAME = 'standalone__low_rank_proj_linformer__prompt'
HEADER = open('cdna_kernels/' + NAME + '.s.ref').read().split('; Override launch')[0]

TENSOR_BYTES = 25165824
HEAD_BYTES = 786432
ROW = 384
WS_HEAD = 49152
NCHUNK = 16

S_Q, S_K, S_V, S_E, S_F, S_O, S_DBG, S_WS = 4, 6, 8, 10, 12, 14, 16, 18
SRD_Q, SRD_KV, SRD_EF, SRD_O, SRD_WS, SRD_DBG = 20, 24, 28, 32, 36, 40
S_WAVE, S_HEAD, S_TK = 44, 45, 47
S_PLO, S_PHI = 48, 49
S_KOFF, S_EOFF = 50, 51
S_T0, S_T1, S_T2, S_T3 = 52, 53, 54, 55
S_QOFF = 56
S_WSOFF = 60
S_CNT = 62
S_SCALE = 63
S_KB, S_EB, S_P = 64, 65, 66
S_LB, S_PE = 67, 68
S_DS = 69
S_MASK = 70
S_NT = 71
S_QOFF2 = 72
S_EX = 76
SRD_ST = 80
S_ST = 84
NSTAMP = 9
STAMP_OFF = 0x4000000

L_KP = 65536
L_SCR = 131072
LDS_BYTES = 163840

V_LANE = 1
V_KOFF = 3
V_EOFF = 4
V_ERD = 12
V_TMP = 16
V_F = 28
V_EF = 44
V_ACC = 60
BUFS = [172, 188, 204, 124, 140, 156, 220]
P2_T = 2
P2_S = 12
P2_P = 44
P2_FR = 60
P2_O = 76
QA = 172
QB = 76
P2_ST = 12
P2_PKO = 12
VP = 236
V_QG, V_QW, V_QR, V_OOFF, V_LB, V_LBK, V_KA, V_VA = VP, VP + 1, VP + 3, VP + 7, VP + 8, VP + 9, VP + 10, VP + 11

def srd(n): return f's[{n}:{n+3}]'
def v(n): return f'v{n}'
def s(n): return f's{n}'

class VM:
    def __init__(self, a): self.a = a; self.q = []
    def issue(self, tag): self.q.append(tag)
    def last(self, tag): return max(i for i, t in enumerate(self.q) if t == tag)
    def wait(self, tag):
        idx = self.last(tag)
        self.a.waitcnt(vm=len(self.q) - 1 - idx)
        self.q = self.q[idx + 1:]
    def has(self, tag): return tag in self.q

def build_srd(a, d, p, nbytes):
    a.salu('s_mov_b32', s(d), s(p))
    a.salu('s_mov_b32', s(d + 1), s(p + 1))
    a.salu('s_mov_b32', s(d + 2), hex(nbytes))
    a.salu('s_mov_b32', s(d + 3), '0x00020000')

class G:
    def __init__(self, opt):
        self.opt = opt
        self.a = Asm()
        self.uid = 0
    def lbl(self, base):
        self.uid += 1
        return f'L_{base}_{self.uid}'
    def stamp(self, i):
        if not self.opt.stamps: return
        a = self.a
        a.smem(f's_memrealtime s[{S_ST+2*i}:{S_ST+2*i+1}]', R('s', S_ST + 2 * i, 2))
        a.waitcnt(lgkm=0)
    def stamp_out(self):
        if not self.opt.stamps: return
        a = self.a
        self.stamp(NSTAMP - 1)
        a.salu('s_lshl_b32', s(S_T0), 's2', 3)
        a.salu('s_add_u32', s(S_T0), s(S_T0), s(S_WAVE))
        a.salu('s_lshl_b32', s(S_T0), s(S_T0), 6)
        a.salu('s_add_u32', s(S_T0), s(S_T0), hex(STAMP_OFF))
        for i in range(NSTAMP):
            a.valu('v_mov_b32', v(220 + i), s(S_ST + 2 * i))
        a.salu('s_getreg_b32', s(S_T1), 'hwreg(HW_REG_XCC_ID)')
        a.salu('s_getreg_b32', s(S_T2), 'hwreg(HW_REG_HW_ID)')
        a.valu('v_mov_b32', v(220 + 9), s(S_T1))
        a.valu('v_mov_b32', v(220 + 10), s(S_T2))
        a.valu('v_mov_b32', v(220 + 11), s(S_CNT))
        a.valu('v_mov_b32', v(2), 0)
        a.valu('v_cmp_eq_u32', 'vcc', 0, v(V_LANE))
        a.salu('s_and_saveexec_b64', f's[{S_EX}:{S_EX+1}]', 'vcc')
        for k in range(3):
            a.bstore('buffer_store_dwordx4', T('v', 220 + 4 * k, 4), v(2), srd(SRD_ST), s(S_T0), off=16 * k)

    def prologue(self, end):
        a = self.a
        a.salu('s_cmp_ge_u32', 's2', 256, nodst=True)
        a.branch('s_cbranch_scc1', end)
        a.smem('s_load_dwordx16 s[4:19], s[0:1], 0', R('s', 4, 16))
        a.valu('v_lshrrev_b32', 'v2', 6, 'v0')
        a.valu('v_and_b32', v(V_LANE), 63, 'v0')
        a.valu('v_readfirstlane_b32', s(S_WAVE), 'v2')
        a.salu('s_and_b32', s(S_T0), 's2', 7)
        a.salu('s_lshr_b32', s(S_T1), 's2', 3)
        a.salu('s_and_b32', s(S_T2), s(S_T1), 3)
        a.salu('s_lshl_b32', s(S_HEAD), s(S_T0), 2)
        a.salu('s_add_u32', s(S_HEAD), s(S_HEAD), s(S_T2))
        a.salu('s_lshr_b32', s(S_TK), s(S_T1), 2)
        a.salu('s_mov_b32', s(S_CNT), 0)
        if self.opt.stamps:
            for i in range(1, NSTAMP): a.salu('s_mov_b32', s(S_ST + 2 * i), 0)
        a.waitcnt(lgkm=0)
        a.salu('s_cmp_eq_u32', s(S_TK), 6, nodst=True)
        a.salu('s_cselect_b32', s(S_T0), 0, s(S_TK))
        a.salu('s_cmp_lt_u32', s(S_T0), 3, nodst=True)
        a.salu('s_cselect_b32', s(SRD_KV), s(S_K), s(S_V))
        a.salu('s_cselect_b32', s(SRD_KV + 1), s(S_K + 1), s(S_V + 1))
        a.salu('s_cselect_b32', s(SRD_EF), s(S_E), s(S_F))
        a.salu('s_cselect_b32', s(SRD_EF + 1), s(S_E + 1), s(S_F + 1))
        a.salu('s_cselect_b32', s(S_T0), 0, 3)
        a.salu('s_sub_u32', s(S_DS), s(S_TK), s(S_T0))
        a.salu('s_mov_b32', s(SRD_KV + 2), hex(TENSOR_BYTES))
        a.salu('s_mov_b32', s(SRD_KV + 3), '0x00020000')
        a.salu('s_mov_b32', s(SRD_EF + 2), hex(262144))
        a.salu('s_mov_b32', s(SRD_EF + 3), '0x00020000')

    def late_setup(self):
        a = self.a; opt = self.opt
        build_srd(a, SRD_Q, S_Q, TENSOR_BYTES)
        build_srd(a, SRD_O, S_O, TENSOR_BYTES)
        build_srd(a, SRD_WS, S_WS, 32 * WS_HEAD)
        build_srd(a, SRD_DBG, S_DBG, 256)
        if opt.stamps: build_srd(a, SRD_ST, S_WS, 268435456)
        t0, t1, t2, t3 = V_TMP + 4, V_TMP + 5, V_TMP + 6, V_TMP + 7
        L = v(V_LANE)
        a.valu('v_lshrrev_b32', v(t0), 3, L)
        a.valu('v_and_b32', v(t1), 7, L)
        a.valu('v_mul_u32_u24', v(V_QG), ROW, v(t0))
        a.valu('v_lshl_add_u32', v(V_QG), v(t1), 4, v(V_QG))
        a.salu('s_lshl_b32', s(S_T0), s(S_WAVE), 12)
        a.salu('s_add_u32', s(S_T0), s(S_T0), L_SCR)
        a.valu('v_lshrrev_b32', v(t2), 4, L)
        a.valu('v_xor_b32', v(t2), v(t2), v(t1))
        a.valu('v_lshlrev_b32', v(t2), 4, v(t2))
        a.valu('v_lshl_add_u32', v(t2), v(t0), 7, v(t2))
        a.valu('v_add_u32', v(V_QW), s(S_T0), v(t2))
        a.valu('v_xor_b32', v(V_QW + 1), 64, v(V_QW))
        a.valu('v_and_b32', v(t0), 31, L)
        a.valu('v_lshrrev_b32', v(t1), 5, L)
        a.valu('v_bfe_u32', v(t2), L, 1, 3)
        a.valu('v_xor_b32', v(t2), v(t2), v(t1))
        a.valu('v_lshlrev_b32', v(t2), 4, v(t2))
        a.valu('v_lshl_add_u32', v(t2), v(t0), 7, v(t2))
        a.valu('v_add_u32', v(V_QR), s(S_T0), v(t2))
        for k in (1, 2, 3):
            a.valu('v_xor_b32', v(V_QR + k), 32 * k, v(V_QR))
        a.valu('v_mul_u32_u24', v(V_OOFF), 12, v(t0))
        a.valu('v_mul_u32_u24', v(t2), 4 * ROW, v(t1))
        a.valu('v_add_u32', v(V_OOFF), v(V_OOFF), v(t2))
        a.valu('v_lshlrev_b32', v(V_LB), 4, L)
        a.valu('v_add_u32', v(V_LBK), hex(L_KP), v(V_LB))
        A = opt.A; B = (64 - 6 * A) // 2
        a.salu('s_cmp_lt_u32', s(S_TK), 6, nodst=True)
        a.salu('s_cselect_b32', s(S_T0), 4, 0)
        a.salu('s_xor_b32', s(S_T0), s(S_T0), s(S_WAVE))
        a.salu('s_mul_i32', s(S_T1), s(S_TK), A)
        a.salu('s_cmp_eq_u32', s(S_TK), 7, nodst=True)
        a.salu('s_cselect_b32', s(S_T1), 6 * A + B, s(S_T1))
        a.salu('s_cmp_lt_u32', s(S_TK), 6, nodst=True)
        a.salu('s_cselect_b32', s(S_T2), A, B)
        a.salu('s_cmp_lt_u32', s(S_T0), s(S_T2), nodst=True)
        a.salu('s_cselect_b32', s(S_NT), 1, 0)
        a.salu('s_add_u32', s(S_T3), s(S_T0), 8)
        a.salu('s_cmp_lt_u32', s(S_T3), s(S_T2), nodst=True)
        a.salu('s_cselect_b32', s(S_NT), 2, s(S_NT))
        a.salu('s_add_u32', s(S_T0), s(S_T0), s(S_T1))
        a.salu('s_mul_i32', s(S_T0), s(S_T0), 32 * ROW)
        a.salu('s_mul_i32', s(S_QOFF), s(S_HEAD), HEAD_BYTES)
        a.salu('s_add_u32', s(S_QOFF), s(S_QOFF), s(S_T0))
        for k in (1, 2, 3):
            a.salu('s_add_u32', s(S_QOFF + k), s(S_QOFF), k * 8 * ROW)
        for k in range(4):
            a.salu('s_add_u32', s(S_QOFF2 + k), s(S_QOFF + k), 8 * 32 * ROW)

    def sweep_setup(self):
        a = self.a
        c, g, t0 = V_TMP, V_TMP + 1, V_TMP + 2
        L = v(V_LANE)
        a.valu('v_and_b32', v(c), 15, L)
        a.valu('v_lshrrev_b32', v(g), 4, L)
        a.salu('s_and_b32', s(S_T0), s(S_WAVE), 3)
        a.salu('s_lshr_b32', s(S_T2), s(S_T0), 1)
        a.salu('s_mul_i32', s(S_T2), s(S_T2), 12288)
        a.salu('s_and_b32', s(S_T3), s(S_T0), 1)
        a.salu('s_lshl_b32', s(S_T3), s(S_T3), 8)
        a.salu('s_add_u32', s(S_T2), s(S_T2), s(S_T3))
        a.salu('s_add_u32', s(S_T2), s(S_T2), L_KP)
        a.valu('v_lshlrev_b32', v(t0), 10, v(g))
        a.valu('v_lshl_add_u32', v(t0), v(c), 4, v(t0))
        a.valu('v_add_u32', v(V_KA), s(S_T2), v(t0))
        a.valu('v_lshlrev_b32', v(t0), 9, v(g))
        a.valu('v_add_u32', v(t0), hex(L_KP + 24576), v(t0))
        a.valu('v_lshlrev_b32', v(c), 2, v(c))
        a.valu('v_add_u32', v(c), s(S_T0), v(c))
        for ds in range(3):
            d, q, r = V_TMP + 4, V_TMP + 5, V_TMP + 6
            a.valu('v_add_u32', v(d), 64 * ds, v(c))
            a.valu('v_mul_u32_u24', v(q), 171, v(d))
            a.valu('v_lshrrev_b32', v(q), 10, v(q))
            a.valu('v_mul_u32_u24', v(r), 6, v(q))
            a.valu('v_sub_u32', v(r), v(d), v(r))
            a.valu('v_lshl_add_u32', v(V_VA + ds), v(r), 12, v(t0))
            a.valu('v_lshl_add_u32', v(V_VA + ds), v(q), 4, v(V_VA + ds))
        a.salu('s_mul_i32', s(S_WSOFF), s(S_HEAD), WS_HEAD)
        a.salu('s_lshl_b32', s(S_T2), s(S_T0), 11)
        a.salu('s_add_u32', s(S_WSOFF), s(S_WSOFF), s(S_T2))

    def q_load_piece(self, vm, base, soff, c):
        a = self.a
        for m in range(4):
            a.bload('buffer_load_dwordx4', T('v', base + 16 * c + 4 * m, 4), v(V_QG), srd(SRD_Q), s(soff + m), off=128 * c, mods=self.opt.qmods)
            vm.issue(('q', base, c))
    def q_load(self, vm, base, soff):
        for c in range(3): self.q_load_piece(vm, base, soff, c)
    def q_convert(self, vm, base):
        a = self.a
        for c in range(3):
            if vm.has(('q', base, c)): vm.wait(('q', base, c))
            for m in range(4):
                a.dswrite('ds_write_b128', v(V_QW + (m & 1)), T('v', base + 16 * c + 4 * m, 4), off=m * 1024)
            a.waitcnt(lgkm=0)
            for k in range(4):
                a.dsread('ds_read_b128', T('v', base + 16 * c + 4 * k, 4), v(V_QR + k))
            a.waitcnt(lgkm=0)

    def phase1(self, isV, prog):
        a = self.a; opt = self.opt
        vm = VM(a)
        NB = opt.nbuf
        GS = 4 if isV else 2
        L = v(V_LANE)
        t0, t1, t2, t3 = V_TMP, V_TMP + 1, V_TMP + 2, V_TMP + 3
        first_free = NCHUNK - NB
        def buf(k): return BUFS[(k - first_free) % NB]
        if opt.ba >= 0:
            build_srd(a, SRD_WS, S_WS, 32 * WS_HEAD)
            a.valu('v_lshlrev_b32', v(V_LB), 4, L)
            for i in range(4): a.valu('v_mov_b32', v(V_F + i), -1)
            a.salu('s_mul_i32', s(S_T0), s(S_HEAD), WS_HEAD)
            a.salu('s_lshl_b32', s(S_T1), s(S_TK), 13)
            a.salu('s_add_u32', s(S_T0), s(S_T0), s(S_T1))
            a.salu('s_lshl_b32', s(S_T1), s(S_WAVE), 11)
            a.salu('s_add_u32', s(S_T0), s(S_T0), s(S_T1))
            for i in range(2):
                a.bstore('buffer_store_dwordx4', T('v', V_F, 4), v(V_LB), srd(SRD_WS), s(S_T0), off=i * 1024, mods='sc1')
                vm.issue('clr')
        a.valu('v_and_b32', v(t0), 15, L)
        a.valu('v_lshrrev_b32', v(t1), 4, L)
        a.valu('v_mul_u32_u24', v(V_KOFF), 8 * ROW, v(t1))
        a.valu('v_lshl_add_u32', v(V_KOFF), v(t0), 3, v(V_KOFF))
        a.salu('s_mul_i32', s(S_KB), s(S_HEAD), HEAD_BYTES)
        a.salu('s_lshl_b32', s(S_T0), s(S_DS), 7)
        a.salu('s_add_u32', s(S_KB), s(S_KB), s(S_T0))
        a.salu('s_mul_i32', s(S_T0), s(S_WAVE), 64 * ROW)
        a.salu('s_add_u32', s(S_KB), s(S_KB), s(S_T0))
        if opt.rot:
            a.salu('s_and_b32', s(S_P), s(S_HEAD), 3)
            a.salu('s_lshl_b32', s(S_P), s(S_P), 1)
            if isV: a.salu('s_add_u32', s(S_P), s(S_P), 1)
        else:
            a.salu('s_mov_b32', s(S_P), 0)
        a.salu('s_mov_b32', s(S_PE), s(S_P))
        st = {'k': 0, 'e': 0, 'esetup': False}
        def e_setup():
            st['esetup'] = True
            a.salu('s_lshl_b32', s(S_EB), s(S_WAVE), 7)
            a.salu('s_lshl_b32', s(S_LB), s(S_WAVE), 13)
            a.valu('v_and_b32', v(t2), 7, L)
            a.valu('v_xor_b32', v(t2), v(t2), v(t1))
            a.valu('v_lshrrev_b32', v(t3), 3, L)
            a.valu('v_lshlrev_b32', v(t3), 12, v(t3))
            a.valu('v_lshl_add_u32', v(t2), v(t2), 4, v(t3))
            a.valu('v_xor_b32', v(t3), 64, v(t2))
            if not isV:
                a.salu('s_lshl_b32', s(S_T0), s(S_WAVE), 16)
            else:
                a.salu('s_lshr_b32', s(S_T0), s(S_WAVE), 1)
                a.salu('s_lshl_b32', s(S_T0), s(S_T0), 17)
            for j in range(8):
                if not isV: hi, lo = (j >> 1) * 16 * 4096, 8 * (j & 1) * 4096
                else: hi, lo = (j >> 2) * 32 * 4096, (8 * ((j >> 1) & 1) + 16 * (j & 1)) * 4096
                a.salu('s_xor_b32', s(S_T1), s(S_T0), hex(hi))
                assert lo - (j % GS) * 1024 >= 0
                if lo: a.salu('s_add_u32', s(S_T1), s(S_T1), hex(lo - (j % GS) * 1024))
                a.valu('v_add_u32', v(V_EOFF + j), s(S_T1), v(t3 if j & 1 else t2))
        def c_setup():
            a.valu('v_lshrrev_b32', v(t2), 1, v(t0))
            a.valu('v_xor_b32', v(t2), v(t2), v(t1))
            a.valu('v_lshlrev_b32', v(t2), 4, v(t2))
            a.valu('v_lshl_add_u32', v(t2), v(t0), 7, v(t2))
            a.valu('v_add_u32', v(V_ERD), s(S_LB), v(t2))
            a.valu('v_xor_b32', v(V_ERD + 1), 64, v(V_ERD))
            a.valu('v_add_u32', v(V_ERD + 2), hex(65536), v(V_ERD))
            a.valu('v_add_u32', v(V_ERD + 3), hex(65536), v(V_ERD + 1))
            a.salu('s_mov_b32', s(S_PLO), '0x05040100')
            a.salu('s_mov_b32', s(S_PHI), '0x07060302')
            if isV:
                a.salu('s_and_b32', s(S_T0), s(S_WAVE), 1)
                a.salu('s_cmp_eq_u32', s(S_T0), 1, nodst=True)
                a.salu('s_cselect_b32', s(S_PLO), '0x07060302', s(S_PLO))
                a.salu('s_cselect_b32', s(S_PHI), '0x05040100', s(S_PHI))
        def issueK():
            k = st['k']; st['k'] += 1
            b = buf(k)
            if k & 1 == 0:
                a.salu('s_mul_i32', s(S_KOFF), s(S_P), 256 * ROW)
                a.salu('s_add_u32', s(S_KOFF), s(S_KOFF), s(S_KB))
                a.salu('s_add_u32', s(S_P), s(S_P), 1)
                a.salu('s_and_b32', s(S_P), s(S_P), 7)
            else:
                a.salu('s_add_u32', s(S_KOFF), s(S_KOFF), 32 * ROW)
            for i in range(8):
                a.bload('buffer_load_dwordx2', T('v', b + 2 * i, 2), v(V_KOFF), srd(SRD_KV), s(S_KOFF), off=i * ROW, mods=opt.kmods)
                vm.issue(('K', k))
        def issueE():
            if not st['esetup']: e_setup()
            p = st['e']; st['e'] += 1
            a.salu('s_lshl_b32', s(S_EOFF), s(S_PE), 9)
            a.salu('s_add_u32', s(S_EOFF), s(S_EOFF), s(S_EB))
            a.salu('s_add_u32', s(S_PE), s(S_PE), 1)
            a.salu('s_and_b32', s(S_PE), s(S_PE), 7)
            for j in range(8):
                if j % GS == 0:
                    a.salu('s_add_u32', 'm0', s(S_LB), (p % 4) * 32768 + j * 1024)
                a.bload_lds('buffer_load_dwordx4', v(V_EOFF + j), srd(SRD_EF), s(S_EOFF), off=(j % GS) * 1024, mods=opt.emods)
                vm.issue(('E', p))
        toks = []
        for m in re.finditer(r'([KE])(\d*)', prog):
            toks += [m.group(1)] * int(m.group(2) or 1)
        assert toks.count('K') == 16 and toks.count('E') == 8, prog
        ti = [0]
        qtail = [0]
        def pump(done, nowait=False):
            while True:
                if ti[0] < len(toks):
                    t = toks[ti[0]]
                    if t == 'E':
                        p = st['e']; ok = p < 4 or done >= 2 * (p - 4) + 2
                    else:
                        k = st['k']; ok = k < NB or done >= k - NB + 1
                    n = 8
                elif opt.qp == 'tail' and qtail[0] < 3:
                    t = 'Q'; ok = done >= first_free + qtail[0] + 1; n = 4
                else:
                    break
                if not ok: break
                if len(vm.q) + n > opt.maxvm:
                    if nowait: break
                    need = [x for x in (('K', done), ('E', done >> 1)) if vm.has(x)]
                    if done < NCHUNK and need and vm.last(vm.q[0]) < max(vm.last(x) for x in need):
                        vm.wait(vm.q[0]); continue
                    if done < NCHUNK and (st['k'] <= done or st['e'] <= done >> 1):
                        vm.wait(vm.q[0]); continue
                    break
                if t == 'E': issueE(); ti[0] += 1
                elif t == 'K': issueK(); ti[0] += 1
                else:
                    self.q_load_piece(vm, QA, S_QOFF, qtail[0]); qtail[0] += 1
        pump(0, True)
        if not st['esetup']:
            e_setup()
        c_setup()
        self.late_setup()
        self.stamp(1)
        pump(0)
        def acc(j, t):
            if not isV: grp, z = t, j
            else: grp, z = (j & 1) + 2 * (t >> 1), (j >> 1) * 2 + (t & 1)
            return T('v', V_ACC + (grp * 4 + z) * 4, 4)
        for k in range(NCHUNK):
            b = buf(k)
            p, hf = k >> 1, k & 1
            assert st['k'] > k and st['e'] > p, ('program deadlock', prog, k)
            tags = [t for t in (('K', k), ('E', p)) if vm.has(t)]
            if tags:
                vm.wait(max(tags, key=vm.last))
            pos = p % 4
            for t in range(4):
                a.dsread('ds_read_b128', T('v', V_EF + 4 * t, 4), v(V_ERD + hf + 2 * (pos >> 1)), off=(pos & 1) * 32768 + t * 2048)
            for j in range(4):
                for m in range(4):
                    s1 = b + 2 * (2 * m) + (j >> 1)
                    s0 = b + 2 * (2 * m + 1) + (j >> 1)
                    a.valu('v_perm_b32', v(V_F + 4 * j + m), v(s0), v(s1), s(S_PHI if j & 1 else S_PLO))
            a.waitcnt(lgkm=0)
            pump(k + 1)
            if k == opt.ba: a.barrier()
            if k == opt.b0: a.barrier()
            for j in range(4):
                for t in range(4):
                    fk = T('v', V_F + 4 * j, 4)
                    fe = T('v', V_EF + 4 * t, 4)
                    A, B = (fe, fk) if isV else (fk, fe)
                    a.mfma('v_mfma_f32_16x16x32_bf16', acc(j, t), A, B, '0' if k == 0 else acc(j, t))
            if k == 7: self.stamp(2)
        return vm

    def reduce_store(self, isV, vm):
        a = self.a; opt = self.opt
        t0 = V_TMP
        L = v(V_LANE)
        self.stamp(3)
        a.valu('v_add_u32', v(t0), s(S_LB), v(V_LB))
        for d in (1, 2, 3):
            a.salu('s_xor_b32', s(S_T0), s(S_LB), d << 13)
            a.valu('v_add_u32', v(t0 + d), s(S_T0), v(V_LB))
        for d in (1, 2, 3):
            for z in range(4):
                a.dswrite('ds_write_b128', v(t0), T('v', V_ACC + (d * 4 + z) * 4, 4), off=(d >> 1) * 32768 + (d & 1) * 4096 + z * 1024)
        a.salu('s_mul_i32', s(S_WSOFF), s(S_HEAD), WS_HEAD)
        a.salu('s_lshl_b32', s(S_T0), s(S_TK), 13)
        a.salu('s_add_u32', s(S_WSOFF), s(S_WSOFF), s(S_T0))
        if not isV:
            a.salu('s_lshl_b32', s(S_T0), s(S_WAVE), 11)
            a.salu('s_add_u32', s(S_WSOFF), s(S_WSOFF), s(S_T0))
            a.salu('s_add_u32', s(S_WSOFF + 1), s(S_WSOFF), 1024)
        else:
            a.salu('s_and_b32', s(S_T0), s(S_WAVE), 1)
            a.salu('s_lshl_b32', s(S_T0), s(S_T0), 11)
            a.salu('s_add_u32', s(S_WSOFF), s(S_WSOFF), s(S_T0))
            a.salu('s_lshr_b32', s(S_T0), s(S_WAVE), 1)
            a.salu('s_lshl_b32', s(S_T0), s(S_T0), 10)
            a.salu('s_add_u32', s(S_WSOFF), s(S_WSOFF), s(S_T0))
            a.salu('s_add_u32', s(S_WSOFF + 1), s(S_WSOFF), 4096)
        a.waitcnt(lgkm=0)
        a.barrier()
        RB = 124
        for d in (1, 2, 3):
            for z in range(4):
                a.dsread('ds_read_b128', T('v', RB + ((d - 1) * 4 + z) * 4, 4), v(t0 + d), off=(d >> 1) * 32768 + (d & 1) * 4096 + z * 1024)
        a.waitcnt(lgkm=8)
        for e in range(16):
            a.valu('v_add_f32', v(V_ACC + e), v(V_ACC + e), v(RB + e))
        a.waitcnt(lgkm=0)
        for e in range(16):
            a.valu('v_add_f32', v(RB + 16 + e), v(RB + 16 + e), v(RB + 32 + e))
        for e in range(16):
            a.valu('v_add_f32', v(V_ACC + e), v(V_ACC + e), v(RB + 16 + e))
        def sm(z, i): return v(V_ACC + z * 4 + i)
        PK = V_F
        for u in range(2):
            if not isV:
                pairs = [(sm(0, 2*u), sm(1, 2*u)), (sm(2, 2*u), sm(3, 2*u)), (sm(0, 2*u+1), sm(1, 2*u+1)), (sm(2, 2*u+1), sm(3, 2*u+1))]
            else:
                pairs = [(sm(2*u, 0), sm(2*u, 1)), (sm(2*u, 2), sm(2*u, 3)), (sm(2*u+1, 0), sm(2*u+1, 1)), (sm(2*u+1, 2), sm(2*u+1, 3))]
            for m, (lo, hi) in enumerate(pairs):
                a.valu('v_cvt_pk_bf16_f32', v(PK + 4 * u + m), lo, hi)
            for m in range(4):
                a.valu('v_min_u32', v(PK + 4 * u + m), -2, v(PK + 4 * u + m))
            a.bstore('buffer_store_dwordx4', T('v', PK + 4 * u, 4), v(V_LB), srd(SRD_WS), s(S_WSOFF + u), mods='sc1')
            vm.issue('wsst')
        self.stamp(4)

    def clear_and_flag(self):
        a = self.a
        build_srd(a, SRD_WS, S_WS, 32 * WS_HEAD)
        a.valu('v_lshlrev_b32', v(V_LB), 4, v(V_LANE))
        for i in range(4): a.valu('v_mov_b32', v(P2_S + i), -1)
        a.salu('s_mul_i32', s(S_T0), s(S_HEAD), WS_HEAD)
        a.salu('s_lshl_b32', s(S_T1), s(S_TK), 13)
        a.salu('s_add_u32', s(S_T0), s(S_T0), s(S_T1))
        a.salu('s_add_u32', s(S_T1), s(S_T0), 4096)
        for i in range(8):
            a.bstore('buffer_store_dwordx4', T('v', P2_S, 4), v(V_LB), srd(SRD_WS), s(S_T0 + (i >> 2)), off=(i & 3) * 1024, mods='sc1')
    def raise_flag(self):
        a = self.a
        a.salu('s_lshl_b32', s(S_T0), s(S_HEAD), 3)
        a.salu('s_add_u32', s(S_T0), s(S_T0), s(S_TK))
        a.valu('v_mov_b32', v(P2_S + 4), 1)
        a.valu('v_mov_b32', v(P2_S + 5), 0)
        a.valu('v_cmp_eq_u32', 'vcc', 0, v(V_LANE))
        a.waitcnt(vm=0)
        a.salu('s_and_saveexec_b64', f's[{S_EX}:{S_EX+1}]', 'vcc')
        a.bstore('buffer_store_byte', v(P2_S + 4), v(P2_S + 5), srd(SRD_DBG), s(S_T0), mods='sc1')
        a.salu('s_mov_b64', 'exec', f's[{S_EX}:{S_EX+1}]')

    def wait_flags(self):
        a = self.a
        top = self.lbl('FL'); out = self.lbl('FLX')
        a.salu('s_lshl_b32', s(S_T3), s(S_HEAD), 3)
        a.valu('v_mov_b32', v(P2_T), 0)
        a.salu('s_mov_b32', s(S_T2), hex(self.opt.spin))
        a.label(top)
        a.bload('buffer_load_dwordx2', T('v', P2_T + 2, 2), v(P2_T), srd(SRD_DBG), s(S_T3), mods='sc1')
        a.waitcnt(vm=0)
        a.valu('v_readfirstlane_b32', s(S_T0), v(P2_T + 2))
        a.valu('v_readfirstlane_b32', s(S_T1), v(P2_T + 3))
        a.salu('s_and_b32', s(S_T1), s(S_T1), '0xffff')
        a.salu('s_xor_b32', s(S_T0), s(S_T0), '0x01010101')
        a.salu('s_xor_b32', s(S_T1), s(S_T1), '0x0101')
        a.salu('s_or_b32', s(S_T0), s(S_T0), s(S_T1))
        a.salu('s_cmp_eq_u32', s(S_T0), 0, nodst=True)
        a.branch('s_cbranch_scc1', out)
        a.other('s_sleep 40')
        a.salu('s_sub_u32', s(S_T2), s(S_T2), 1)
        a.salu('s_cmp_lg_u32', s(S_T2), 0, nodst=True)
        a.branch('s_cbranch_scc1', top)
        a.label(out)

    def cheap_poll(self):
        a = self.a
        top = self.lbl('PL'); out = self.lbl('PLX')
        a.valu('v_min_u32', v(P2_T), 5, v(V_LANE))
        a.valu('v_lshlrev_b32', v(P2_T), 13, v(P2_T))
        a.salu('s_mov_b32', s(S_T2), hex(self.opt.spin))
        a.salu('s_mov_b64', f's[{S_EX}:{S_EX+1}]', 'exec')
        a.salu('s_mov_b64', 'exec', 63)
        a.label(top)
        a.bload('buffer_load_dword', v(P2_T + 2), v(P2_T), srd(SRD_WS), s(S_WSOFF), off=1024, mods='sc1')
        a.waitcnt(vm=0)
        if self.opt.pollall:
            a.valu('v_cmp_eq_u32', 'vcc', -1, v(P2_T + 2))
            a.branch('s_cbranch_vccz', out)
        else:
            a.valu('v_cmp_ne_u32', 'vcc', -1, v(P2_T + 2))
            a.branch('s_cbranch_vccnz', out)
        a.other(f's_sleep {self.opt.pollsleep}')
        a.salu('s_sub_u32', s(S_T2), s(S_T2), 1)
        a.salu('s_cmp_lg_u32', s(S_T2), 0, nodst=True)
        a.branch('s_cbranch_scc1', top)
        a.label(out)
        a.salu('s_mov_b64', 'exec', f's[{S_EX}:{S_EX+1}]')

    def sweep(self, vm, mid=None):
        a = self.a
        def ld(tk):
            a.salu('s_add_u32', s(S_T0), s(S_WSOFF), tk * 8192)
            for u in range(2):
                a.bload('buffer_load_dwordx4', T('v', P2_ST + 8 * tk + 4 * u, 4), v(V_LB), srd(SRD_WS), s(S_T0), off=u * 1024, mods='sc1')
        for tk in range(6):
            ld(tk); vm.issue('sw'); vm.issue('sw')
        if mid: mid()
        a.salu('s_mov_b32', s(S_MASK), 63)
        a.salu('s_mov_b32', s(S_T2), hex(self.opt.spin))
        top = self.lbl('SW'); out = self.lbl('SWX')
        a.label(top)
        a.waitcnt(vm=0)
        vm.q = []
        a.salu('s_add_u32', s(S_CNT), s(S_CNT), 1)
        for tk in range(6):
            nxt = self.lbl('SWN')
            a.salu('s_bitcmp1_b32', s(S_MASK), tk, nodst=True)
            a.branch('s_cbranch_scc0', nxt)
            b = P2_ST + 8 * tk
            m = v(P2_T)
            a.valu('v_max3_u32', m, v(b), v(b + 1), v(b + 2))
            a.valu('v_max3_u32', m, m, v(b + 3), v(b + 4))
            a.valu('v_max3_u32', m, m, v(b + 5), v(b + 6))
            a.valu('v_max_u32', m, m, v(b + 7))
            a.valu('v_cmp_eq_u32', 'vcc', -1, m)
            again = self.lbl('SWA')
            a.branch('s_cbranch_vccnz', again)
            for u in range(2):
                if tk < 3:
                    a.dswrite('ds_write_b128', v(V_KA), T('v', b + 4 * u, 4), off=tk * 4096 + u * 512)
                else:
                    a.dswrite('ds_write_b128', v(V_VA + tk - 3), T('v', b + 4 * u, 4), off=u * 2048)
            a.salu('s_bitset0_b32', s(S_MASK), tk)
            a.branch('s_branch', nxt)
            a.label(again)
            ld(tk)
            a.label(nxt)
        a.salu('s_cmp_eq_u32', s(S_MASK), 0, nodst=True)
        a.branch('s_cbranch_scc1', out)
        a.salu('s_sub_u32', s(S_T2), s(S_T2), 1)
        a.salu('s_cmp_lg_u32', s(S_T2), 0, nodst=True)
        a.branch('s_cbranch_scc1', top)
        a.waitcnt(vm=0)
        a.label(out)
        a.waitcnt(lgkm=0)

    def phase2(self, Q, soff):
        a = self.a; opt = self.opt
        MF = 'v_mfma_f32_32x32x16_bf16'
        seq = [(s_, mt) for s_ in range(12) for mt in range(2)]
        NF = 4
        def rd(i, off):
            a.dsread('ds_read_b128', T('v', P2_FR + 4 * (i % NF), 4), v(V_LBK), off=off)
        def koff(i): s_, mt = seq[i]; return (mt * 12 + s_) * 1024
        for i in range(NF - 1): rd(i, koff(i))
        for i, (s_, mt) in enumerate(seq):
            if i + NF - 1 < len(seq):
                rd(i + NF - 1, koff(i + NF - 1))
                a.waitcnt(lgkm=NF - 1)
            else:
                a.waitcnt(lgkm=len(seq) - 1 - i)
            acc = T('v', P2_S + 16 * mt, 16)
            a.mfma(MF, acc, T('v', P2_FR + 4 * (i % NF), 4), T('v', Q + 4 * s_, 4), '0' if s_ == 0 else acc)
        seq2 = [(t, s_) for t in range(6) for s_ in range(4)]
        def voff(i): t, s_ = seq2[i]; return 24576 + (t * 4 + s_) * 1024
        x = [v(P2_S + i) for i in range(32)]
        m, t = v(P2_T), v(P2_T + 1)
        a.valu('v_max3_f32', m, x[0], x[1], x[2])
        for i in range(3, 31, 2):
            a.valu('v_max3_f32', m, m, x[i], x[i + 1])
        a.valu('v_max_f32', m, m, x[31])
        for i in range(NF - 1): rd(i, voff(i))
        a.valu('v_mov_b32', t, m)
        a.valu('v_permlane32_swap_b32', m, t)
        a.valu('v_max_f32', m, m, t)
        c = (192 ** -0.5) * math.log2(math.e)
        cbits = struct.unpack('<I', struct.pack('<f', c))[0]
        a.salu('s_mov_b32', s(S_SCALE), hex(cbits))
        a.valu('v_mul_f32', m, s(S_SCALE), m)
        for i in range(32):
            a.valu('v_fma_f32', x[i], x[i], s(S_SCALE), f'-{m}')
        for i in range(32):
            a.valu('v_exp_f32', x[i], x[i])
        l0, l1 = v(P2_T + 2), v(P2_T + 3)
        a.valu('v_add_f32', l0, x[0], x[1])
        a.valu('v_add_f32', l1, x[2], x[3])
        for i in range(4, 32, 2):
            a.valu('v_add_f32', l0, l0, x[i])
            a.valu('v_add_f32', l1, l1, x[i + 1])
        a.valu('v_add_f32', l0, l0, l1)
        a.valu('v_mov_b32', t, l0)
        a.valu('v_permlane32_swap_b32', l0, t)
        a.valu('v_add_f32', l0, l0, t)
        a.valu('v_rcp_f32', l0, l0)
        for i in range(32):
            a.valu('v_mul_f32', x[i], x[i], l0)
        for i in range(16):
            a.valu('v_cvt_pk_bf16_f32', v(P2_P + i), x[2 * i], x[2 * i + 1])
        for i, (tt, s_) in enumerate(seq2):
            if i + NF - 1 < len(seq2):
                rd(i + NF - 1, voff(i + NF - 1))
                a.waitcnt(lgkm=NF - 1)
            else:
                a.waitcnt(lgkm=len(seq2) - 1 - i)
            acc = T('v', P2_O + 16 * tt, 16)
            a.mfma(MF, acc, T('v', P2_P + 4 * s_, 4), T('v', P2_FR + 4 * (i % NF), 4), '0' if s_ == 0 else acc)
        for i in range(16):
            pk = P2_PKO + 4 * (i % 8)
            if i == 8 and False: pass
            for k in range(3):
                a.valu('v_cvt_pk_bf16_f32', v(pk + k), v(P2_O + 16 * (2 * k) + i), v(P2_O + 16 * (2 * k + 1) + i))
            a.bstore('buffer_store_dwordx3', T('v', pk, 3), v(V_OOFF), srd(SRD_O), s(soff + (i >> 2)), off=(i & 3) * ROW, mods=opt.omods)

    def build(self):
        a = self.a; opt = self.opt
        self.stamp(0)
        self.prologue('L_END')
        a.salu('s_cmp_ge_u32', s(S_TK), 6, nodst=True)
        a.branch('s_cbranch_scc1', 'L_NP')
        a.salu('s_cmp_ge_u32', s(S_WAVE), 4, nodst=True)
        a.branch('s_cbranch_scc1', 'L_HELP')
        progs = opt.prog.split(',')
        a.salu('s_cmp_ge_u32', s(S_TK), 3, nodst=True)
        a.branch('s_cbranch_scc1', 'L_PV')
        for isV in (False, True):
            nm = 'V' if isV else 'K'
            if isV: a.label('L_PV')
            vms = []
            if len(progs) == 2:
                a.salu('s_add_u32', s(S_T0), s(S_HEAD), s(S_TK))
                a.salu('s_bitcmp1_b32', s(S_T0), 0, nodst=True)
                a.branch('s_cbranch_scc1', f'L_P{nm}1')
            for pi, prog in enumerate(progs):
                if pi: a.label(f'L_P{nm}{pi}')
                vm = self.phase1(isV, prog)
                vms.append(list(vm.q))
                if pi + 1 < len(progs): a.branch('s_branch', f'L_R{nm}')
            assert all(x == vms[0] for x in vms), vms
            if len(progs) > 1: a.label(f'L_R{nm}')
            self.reduce_store(isV, vm)
            if not isV: a.branch('s_branch', 'L_PJ')
        a.label('L_PJ')
        if opt.qp == 'store': self.q_load(vm, QA, S_QOFF)
        if opt.qp in ('tail', 'store'):
            self.q_convert(vm, QA)
        a.barrier()
        self.stamp(6)
        a.salu('s_cmp_eq_u32', s(S_NT), 0, nodst=True)
        a.branch('s_cbranch_scc1', 'L_FIN')
        if opt.qp == 'b3':
            self.q_load(vm, QA, S_QOFF)
            self.q_convert(vm, QA)
            self.stamp(7)
        a.branch('s_branch', 'L_P2A')
        a.label('L_HELP')
        vm = VM(a)
        if opt.ba < 0:
            a.salu('s_cmp_eq_u32', s(S_WAVE), 4, nodst=True)
            a.branch('s_cbranch_scc0', 'L_H0')
            self.clear_and_flag()
            a.label('L_H0')
        self.late_setup()
        self.sweep_setup()
        if opt.ba >= 0: a.barrier()
        a.salu('s_cmp_eq_u32', s(S_WAVE), 4, nodst=True)
        a.branch('s_cbranch_scc0', 'L_H1')
        self.raise_flag()
        a.label('L_H1')
        self.stamp(1)
        if opt.qh == 'start':
            self.q_load(vm, QA, S_QOFF)
            self.q_convert(vm, QA)
        a.barrier()
        self.stamp(2)
        a.salu('s_cmp_eq_u32', s(S_WAVE), 5, nodst=True)
        a.branch('s_cbranch_scc0', 'L_H2')
        self.wait_flags()
        a.label('L_H2')
        if opt.qh == 'b0':
            self.q_load(vm, QA, S_QOFF)
        self.stamp(3)
        a.barrier()
        self.stamp(4)
        self.sweep(vm, mid=(lambda: self.q_convert(vm, QA)) if opt.qh == 'b0' else None)
        self.stamp(5)
        a.barrier()
        self.stamp(6)
        a.branch('s_branch', 'L_P2A')
        a.label('L_NP')
        vm = VM(a)
        if opt.warm:
            a.valu('v_lshlrev_b32', v(P2_T), 4, v(V_LANE))
            a.salu('s_and_b32', s(S_T0), s(S_HEAD), 3)
            a.salu('s_lshl_b32', s(S_T0), s(S_T0), 16)
            a.salu('s_lshl_b32', s(S_T1), s(S_WAVE), 13)
            a.salu('s_add_u32', s(S_T0), s(S_T0), s(S_T1))
            a.salu('s_add_u32', s(S_T1), s(S_T0), 4096)
            for i in range(8):
                a.bload('buffer_load_dwordx4', T('v', 28 + 4 * i, 4), v(P2_T), srd(SRD_EF), s(S_T0 + (i >> 2)), off=(i & 3) * 1024)
                vm.issue('warm')
        self.late_setup()
        self.sweep_setup()
        self.stamp(1)
        self.q_load(vm, QA, S_QOFF)
        if opt.A < 8:
            a.salu('s_cmp_lt_u32', s(S_NT), 2, nodst=True)
            a.branch('s_cbranch_scc1', 'L_N1')
            vm2 = VM(a); vm2.q = list(vm.q)
            self.q_load(vm2, QB, S_QOFF2)
            self.q_convert(vm2, QA)
            self.q_convert(vm2, QB)
            a.branch('s_branch', 'L_N2')
            a.label('L_N1')
        self.q_convert(vm, QA)
        if opt.A < 8: a.label('L_N2')
        self.stamp(2)
        a.salu('s_cmp_eq_u32', s(S_WAVE), 4, nodst=True)
        a.branch('s_cbranch_scc0', 'L_N4')
        self.wait_flags()
        a.label('L_N4')
        a.barrier()
        a.salu('s_cmp_lt_u32', s(S_WAVE), 4, nodst=True)
        a.branch('s_cbranch_scc1', 'L_N3')
        self.stamp(3)
        self.cheap_poll()
        self.stamp(4)
        self.sweep(VM(a))
        self.stamp(5)
        a.label('L_N3')
        a.barrier()
        self.stamp(6)
        if opt.A < 8:
            a.salu('s_cmp_lt_u32', s(S_NT), 2, nodst=True)
            a.branch('s_cbranch_scc1', 'L_P2A')
            self.phase2(QB, S_QOFF2)
            self.stamp(7)
        a.label('L_P2A')
        self.phase2(QA, S_QOFF)
        a.label('L_FIN')
        self.stamp_out()
        a.label('L_END')
        a.other('s_endpgm')
        kn = NAME + '_kernel'
        out = HEADER
        out += f'; @launch grid=(256,1,1) block=(512,1,1) lds={LDS_BYTES}\n'
        out += '.amdgcn_target "amdgcn-amd-amdhsa--gfx950"\n.text\n'
        out += f'.globl {kn}\n.p2align 8\n.type {kn},@function\n{kn}:\n' + a.text()
        out += f'''.section .rodata,"a"
.p2align 6
.amdhsa_kernel {kn}
  .amdhsa_next_free_vgpr 256
  .amdhsa_next_free_sgpr 102
  .amdhsa_accum_offset 256
  .amdhsa_group_segment_fixed_size 0
  .amdhsa_kernarg_size 64
  .amdhsa_user_sgpr_count 2
  .amdhsa_user_sgpr_kernarg_segment_ptr 1
  .amdhsa_system_sgpr_workgroup_id_x 1
.end_amdhsa_kernel
'''
        return out

def main():
    ap = argparse.ArgumentParser()
    ap.add_argument('--kmods', default='nt')
    ap.add_argument('--emods', default='')
    ap.add_argument('--qmods', default='nt')
    ap.add_argument('--omods', default='nt')
    ap.add_argument('--nbuf', type=int, default=6)
    ap.add_argument('--maxvm', type=int, default=63)
    ap.add_argument('--rot', type=int, default=1)
    ap.add_argument('--prog', default='K4E4K10E4K2')
    ap.add_argument('--A', type=int, default=8)
    ap.add_argument('--b0', type=int, default=10)
    ap.add_argument('--qp', default='b3')
    ap.add_argument('--ba', type=int, default=0)
    ap.add_argument('--qh', default='b0')
    ap.add_argument('--warm', type=int, default=1)
    ap.add_argument('--spin', type=int, default=100000)
    ap.add_argument('--pollall', type=int, default=0)
    ap.add_argument('--pollsleep', type=int, default=8)
    ap.add_argument('--stamps', type=int, default=0)
    ap.add_argument('-o', default='cdna_kernels/' + NAME + '.s')
    opt = ap.parse_args()
    open(opt.o, 'w').write(G(opt).build())

if __name__ == '__main__':
    main()
```

```python
import sys, math, argparse, struct, re
from asmlib import Asm, R, T

NAME = 'standalone__low_rank_proj_linformer__prompt'
HEADER = open('cdna_kernels/' + NAME + '.s.ref').read().split('; Override launch')[0]

TENSOR_BYTES = 25165824
HEAD_BYTES = 786432
ROW = 384
WS_HEAD = 49152
NCHUNK = 16

S_Q, S_K, S_V, S_E, S_F, S_O, S_DBG, S_WS = 4, 6, 8, 10, 12, 14, 16, 18
SRD_Q, SRD_KV, SRD_EF, SRD_O, SRD_WS, SRD_DBG = 20, 24, 28, 32, 36, 40
S_WAVE, S_HEAD, S_TK = 44, 45, 47
S_PLO, S_PHI = 48, 49
S_KOFF, S_EOFF = 50, 51
S_T0, S_T1, S_T2, S_T3 = 52, 53, 54, 55
S_QOFF = 56
S_WSOFF = 60
S_CNT = 62
S_SCALE = 63
S_KB, S_EB, S_P = 64, 65, 66
S_LB, S_PE = 67, 68
S_DS = 69
S_MASK = 70
S_NT = 71
S_QOFF2 = 72
S_EX = 76
SRD_ST = 80
S_ST = 84
NSTAMP = 9
STAMP_OFF = 0x4000000

L_KP = 65536
L_SCR = 131072
LDS_BYTES = 163840

V_LANE = 1
V_KOFF = 3
V_EOFF = 4
V_ERD = 12
V_TMP = 16
V_F = 28
V_EF = 44
V_ACC = 60
BUFS = [172, 188, 204, 124, 140, 156, 220]
P2_T = 2
P2_S = 12
P2_P = 44
P2_FR = 60
P2_O = 76
QA = 172
QB = 76
P2_ST = 12
P2_PKO = 12
VP = 236
V_QG, V_QW, V_QR, V_OOFF, V_LB, V_LBK, V_KA, V_VA = VP, VP + 1, VP + 3, VP + 7, VP + 8, VP + 9, VP + 10, VP + 11

def srd(n): return f's[{n}:{n+3}]'
def v(n): return f'v{n}'
def s(n): return f's{n}'

class VM:
    def __init__(self, a): self.a = a; self.q = []
    def issue(self, tag): self.q.append(tag)
    def last(self, tag): return max(i for i, t in enumerate(self.q) if t == tag)
    def wait(self, tag):
        idx = self.last(tag)
        self.a.waitcnt(vm=len(self.q) - 1 - idx)
        self.q = self.q[idx + 1:]
    def has(self, tag): return tag in self.q

def build_srd(a, d, p, nbytes):
    a.salu('s_mov_b32', s(d), s(p))
    a.salu('s_mov_b32', s(d + 1), s(p + 1))
    a.salu('s_mov_b32', s(d + 2), hex(nbytes))
    a.salu('s_mov_b32', s(d + 3), '0x00020000')

class G:
    def __init__(self, opt):
        self.opt = opt
        self.a = Asm()
        self.uid = 0
    def lbl(self, base):
        self.uid += 1
        return f'L_{base}_{self.uid}'
    def stamp(self, i):
        if not self.opt.stamps: return
        a = self.a
        a.smem(f's_memrealtime s[{S_ST+2*i}:{S_ST+2*i+1}]', R('s', S_ST + 2 * i, 2))
        a.waitcnt(lgkm=0)
    def stamp_out(self):
        if not self.opt.stamps: return
        a = self.a
        self.stamp(NSTAMP - 1)
        if self.opt.stamps == 2:
            a.salu('s_and_b32', s(S_T0), s(S_WAVE), 3)
            a.salu('s_cmp_eq_u32', s(S_T0), 0, nodst=True)
            a.branch('s_cbranch_scc0', 'L_END')
            a.salu('s_cmp_lt_u32', s(S_TK), 6, nodst=True)
            a.salu('s_cselect_b32', s(S_T1), -1, 0)
            a.salu('s_cmp_eq_u32', s(S_WAVE), 0, nodst=True)
            a.salu('s_cselect_b32', s(S_T1), s(S_T1), 0)
            a.salu('s_cselect_b32', s(S_T2), 0, -1)
            slots = [(0, 0, None), (0, 1, None), (3, 0, S_T1), (3, 1, S_T1), (4, 0, S_T1), (5, 0, S_T2), (5, 1, S_T2), (8, 0, None), (8, 1, None),
                     (2, 0, S_T1), (2, 1, S_T1), (1, 0, S_T1), (1, 1, S_T1), (6, 0, None), (6, 1, None)]
            a.valu('v_mov_b32', v(3), 0)
            for i, (st_, inv, msk) in enumerate(slots):
                if inv: a.salu('s_not_b32', s(S_T3), s(S_ST + 2 * st_))
                else: a.salu('s_mov_b32', s(S_T3), s(S_ST + 2 * st_))
                if msk: a.salu('s_and_b32', s(S_T3), s(S_T3), s(msk))
                a.other(f's_nop 1')
                a.valu('v_writelane_b32', v(3), s(S_T3), i, rmw=True)
            a.valu('v_lshlrev_b32', v(2), 2, v(V_LANE))
            a.salu('s_mov_b64', 'exec', '0xffff')
            a.bstore('buffer_atomic_umax', v(3), v(2), srd(SRD_DBG), 0, mods='sc1')
            return
        a.salu('s_lshl_b32', s(S_T0), 's2', 3)
        a.salu('s_add_u32', s(S_T0), s(S_T0), s(S_WAVE))
        a.salu('s_lshl_b32', s(S_T0), s(S_T0), 6)
        a.salu('s_add_u32', s(S_T0), s(S_T0), hex(STAMP_OFF))
        for i in range(NSTAMP):
            a.valu('v_mov_b32', v(220 + i), s(S_ST + 2 * i))
        a.salu('s_getreg_b32', s(S_T1), 'hwreg(HW_REG_XCC_ID)')
        a.salu('s_getreg_b32', s(S_T2), 'hwreg(HW_REG_HW_ID)')
        a.valu('v_mov_b32', v(220 + 9), s(S_T1))
        a.valu('v_mov_b32', v(220 + 10), s(S_T2))
        a.valu('v_mov_b32', v(220 + 11), s(S_CNT))
        a.valu('v_mov_b32', v(2), 0)
        a.valu('v_cmp_eq_u32', 'vcc', 0, v(V_LANE))
        a.salu('s_and_saveexec_b64', f's[{S_EX}:{S_EX+1}]', 'vcc')
        for k in range(3):
            a.bstore('buffer_store_dwordx4', T('v', 220 + 4 * k, 4), v(2), srd(SRD_ST), s(S_T0), off=16 * k)

    def prologue(self, end):
        a = self.a
        a.salu('s_cmp_ge_u32', 's2', 256, nodst=True)
        a.branch('s_cbranch_scc1', end)
        a.smem('s_load_dwordx16 s[4:19], s[0:1], 0', R('s', 4, 16))
        a.valu('v_lshrrev_b32', 'v2', 6, 'v0')
        a.valu('v_and_b32', v(V_LANE), 63, 'v0')
        a.valu('v_readfirstlane_b32', s(S_WAVE), 'v2')
        a.salu('s_and_b32', s(S_T0), 's2', 7)
        a.salu('s_lshr_b32', s(S_T1), 's2', 3)
        a.salu('s_and_b32', s(S_T2), s(S_T1), 3)
        a.salu('s_lshl_b32', s(S_HEAD), s(S_T0), 2)
        a.salu('s_add_u32', s(S_HEAD), s(S_HEAD), s(S_T2))
        a.salu('s_lshr_b32', s(S_TK), s(S_T1), 2)
        a.salu('s_mov_b32', s(S_CNT), 0)
        if self.opt.stamps:
            for i in range(1, NSTAMP): a.salu('s_mov_b32', s(S_ST + 2 * i), 0)
        a.waitcnt(lgkm=0)
        a.salu('s_cmp_eq_u32', s(S_TK), 6, nodst=True)
        a.salu('s_cselect_b32', s(S_T0), 0, s(S_TK))
        a.salu('s_cmp_lt_u32', s(S_T0), 3, nodst=True)
        a.salu('s_cselect_b32', s(SRD_KV), s(S_K), s(S_V))
        a.salu('s_cselect_b32', s(SRD_KV + 1), s(S_K + 1), s(S_V + 1))
        a.salu('s_cselect_b32', s(SRD_EF), s(S_E), s(S_F))
        a.salu('s_cselect_b32', s(SRD_EF + 1), s(S_E + 1), s(S_F + 1))
        a.salu('s_cselect_b32', s(S_T0), 0, 3)
        a.salu('s_sub_u32', s(S_DS), s(S_TK), s(S_T0))
        a.salu('s_mov_b32', s(SRD_KV + 2), hex(TENSOR_BYTES))
        a.salu('s_mov_b32', s(SRD_KV + 3), '0x00020000')
        a.salu('s_mov_b32', s(SRD_EF + 2), hex(262144))
        a.salu('s_mov_b32', s(SRD_EF + 3), '0x00020000')

    def late_setup(self):
        a = self.a; opt = self.opt
        build_srd(a, SRD_Q, S_Q, TENSOR_BYTES)
        build_srd(a, SRD_O, S_O, TENSOR_BYTES)
        build_srd(a, SRD_WS, S_WS, 32 * WS_HEAD)
        build_srd(a, SRD_DBG, S_DBG, 256)
        if opt.stamps: build_srd(a, SRD_ST, S_WS, 268435456)
        t0, t1, t2, t3 = V_TMP + 4, V_TMP + 5, V_TMP + 6, V_TMP + 7
        L = v(V_LANE)
        a.valu('v_lshrrev_b32', v(t0), 3, L)
        a.valu('v_and_b32', v(t1), 7, L)
        a.valu('v_mul_u32_u24', v(V_QG), ROW, v(t0))
        a.valu('v_lshl_add_u32', v(V_QG), v(t1), 4, v(V_QG))
        a.salu('s_lshl_b32', s(S_T0), s(S_WAVE), 12)
        a.salu('s_add_u32', s(S_T0), s(S_T0), L_SCR)
        a.valu('v_lshrrev_b32', v(t2), 4, L)
        a.valu('v_xor_b32', v(t2), v(t2), v(t1))
        a.valu('v_lshlrev_b32', v(t2), 4, v(t2))
        a.valu('v_lshl_add_u32', v(t2), v(t0), 7, v(t2))
        a.valu('v_add_u32', v(V_QW), s(S_T0), v(t2))
        a.valu('v_xor_b32', v(V_QW + 1), 64, v(V_QW))
        a.valu('v_and_b32', v(t0), 31, L)
        a.valu('v_lshrrev_b32', v(t1), 5, L)
        a.valu('v_bfe_u32', v(t2), L, 1, 3)
        a.valu('v_xor_b32', v(t2), v(t2), v(t1))
        a.valu('v_lshlrev_b32', v(t2), 4, v(t2))
        a.valu('v_lshl_add_u32', v(t2), v(t0), 7, v(t2))
        a.valu('v_add_u32', v(V_QR), s(S_T0), v(t2))
        for k in (1, 2, 3):
            a.valu('v_xor_b32', v(V_QR + k), 32 * k, v(V_QR))
        a.valu('v_mul_u32_u24', v(V_OOFF), 12, v(t0))
        a.valu('v_mul_u32_u24', v(t2), 4 * ROW, v(t1))
        a.valu('v_add_u32', v(V_OOFF), v(V_OOFF), v(t2))
        a.valu('v_lshlrev_b32', v(V_LB), 4, L)
        a.valu('v_add_u32', v(V_LBK), hex(L_KP), v(V_LB))
        A = opt.A; B = (64 - 6 * A) // 2
        a.salu('s_cmp_lt_u32', s(S_TK), 6, nodst=True)
        a.salu('s_cselect_b32', s(S_T0), 4, 0)
        a.salu('s_xor_b32', s(S_T0), s(S_T0), s(S_WAVE))
        a.salu('s_mul_i32', s(S_T1), s(S_TK), A)
        a.salu('s_cmp_eq_u32', s(S_TK), 7, nodst=True)
        a.salu('s_cselect_b32', s(S_T1), 6 * A + B, s(S_T1))
        a.salu('s_cmp_lt_u32', s(S_TK), 6, nodst=True)
        a.salu('s_cselect_b32', s(S_T2), A, B)
        a.salu('s_cmp_lt_u32', s(S_T0), s(S_T2), nodst=True)
        a.salu('s_cselect_b32', s(S_NT), 1, 0)
        a.salu('s_add_u32', s(S_T3), s(S_T0), 8)
        a.salu('s_cmp_lt_u32', s(S_T3), s(S_T2), nodst=True)
        a.salu('s_cselect_b32', s(S_NT), 2, s(S_NT))
        a.salu('s_add_u32', s(S_T0), s(S_T0), s(S_T1))
        a.salu('s_mul_i32', s(S_T0), s(S_T0), 32 * ROW)
        a.salu('s_mul_i32', s(S_QOFF), s(S_HEAD), HEAD_BYTES)
        a.salu('s_add_u32', s(S_QOFF), s(S_QOFF), s(S_T0))
        for k in (1, 2, 3):
            a.salu('s_add_u32', s(S_QOFF + k), s(S_QOFF), k * 8 * ROW)
        for k in range(4):
            a.salu('s_add_u32', s(S_QOFF2 + k), s(S_QOFF + k), 8 * 32 * ROW)

    def sweep_setup(self):
        a = self.a
        c, g, t0 = V_TMP, V_TMP + 1, V_TMP + 2
        L = v(V_LANE)
        a.valu('v_and_b32', v(c), 15, L)
        a.valu('v_lshrrev_b32', v(g), 4, L)
        a.salu('s_and_b32', s(S_T0), s(S_WAVE), 3)
        a.salu('s_lshr_b32', s(S_T2), s(S_T0), 1)
        a.salu('s_mul_i32', s(S_T2), s(S_T2), 12288)
        a.salu('s_and_b32', s(S_T3), s(S_T0), 1)
        a.salu('s_lshl_b32', s(S_T3), s(S_T3), 8)
        a.salu('s_add_u32', s(S_T2), s(S_T2), s(S_T3))
        a.salu('s_add_u32', s(S_T2), s(S_T2), L_KP)
        a.valu('v_lshlrev_b32', v(t0), 10, v(g))
        a.valu('v_lshl_add_u32', v(t0), v(c), 4, v(t0))
        a.valu('v_add_u32', v(V_KA), s(S_T2), v(t0))
        a.valu('v_lshlrev_b32', v(t0), 9, v(g))
        a.valu('v_add_u32', v(t0), hex(L_KP + 24576), v(t0))
        a.valu('v_lshlrev_b32', v(c), 2, v(c))
        a.valu('v_add_u32', v(c), s(S_T0), v(c))
        for ds in range(3):
            d, q, r = V_TMP + 4, V_TMP + 5, V_TMP + 6
            a.valu('v_add_u32', v(d), 64 * ds, v(c))
            a.valu('v_mul_u32_u24', v(q), 171, v(d))
            a.valu('v_lshrrev_b32', v(q), 10, v(q))
            a.valu('v_mul_u32_u24', v(r), 6, v(q))
            a.valu('v_sub_u32', v(r), v(d), v(r))
            a.valu('v_lshl_add_u32', v(V_VA + ds), v(r), 12, v(t0))
            a.valu('v_lshl_add_u32', v(V_VA + ds), v(q), 4, v(V_VA + ds))
        a.salu('s_mul_i32', s(S_WSOFF), s(S_HEAD), WS_HEAD)
        a.salu('s_lshl_b32', s(S_T2), s(S_T0), 11)
        a.salu('s_add_u32', s(S_WSOFF), s(S_WSOFF), s(S_T2))

    def q_load_piece(self, vm, base, soff, c):
        a = self.a
        for m in range(4):
            a.bload('buffer_load_dwordx4', T('v', base + 16 * c + 4 * m, 4), v(V_QG), srd(SRD_Q), s(soff + m), off=128 * c, mods=self.opt.qmods)
            vm.issue(('q', base, c))
    def q_load(self, vm, base, soff):
        for c in range(3): self.q_load_piece(vm, base, soff, c)
    def q_convert(self, vm, base):
        a = self.a
        for c in range(3):
            if vm.has(('q', base, c)): vm.wait(('q', base, c))
            for m in range(4):
                a.dswrite('ds_write_b128', v(V_QW + (m & 1)), T('v', base + 16 * c + 4 * m, 4), off=m * 1024)
            a.waitcnt(lgkm=0)
            for k in range(4):
                a.dsread('ds_read_b128', T('v', base + 16 * c + 4 * k, 4), v(V_QR + k))
            a.waitcnt(lgkm=0)

    def phase1(self, isV, prog):
        a = self.a; opt = self.opt
        vm = VM(a)
        NB = opt.nbuf
        GS = 4 if isV else 2
        L = v(V_LANE)
        t0, t1, t2, t3 = V_TMP, V_TMP + 1, V_TMP + 2, V_TMP + 3
        first_free = NCHUNK - NB
        def buf(k): return BUFS[(k - first_free) % NB]
        if opt.ba >= 0:
            build_srd(a, SRD_WS, S_WS, 32 * WS_HEAD)
            a.valu('v_lshlrev_b32', v(V_LB), 4, L)
            for i in range(4): a.valu('v_mov_b32', v(V_F + i), -1)
            a.salu('s_mul_i32', s(S_T0), s(S_HEAD), WS_HEAD)
            a.salu('s_lshl_b32', s(S_T1), s(S_TK), 13)
            a.salu('s_add_u32', s(S_T0), s(S_T0), s(S_T1))
            a.salu('s_lshl_b32', s(S_T1), s(S_WAVE), 11)
            a.salu('s_add_u32', s(S_T0), s(S_T0), s(S_T1))
            for i in range(2):
                a.bstore('buffer_store_dwordx4', T('v', V_F, 4), v(V_LB), srd(SRD_WS), s(S_T0), off=i * 1024, mods='sc1')
                vm.issue('clr')
        a.valu('v_and_b32', v(t0), 15, L)
        a.valu('v_lshrrev_b32', v(t1), 4, L)
        a.valu('v_mul_u32_u24', v(V_KOFF), 8 * ROW, v(t1))
        a.valu('v_lshl_add_u32', v(V_KOFF), v(t0), 3, v(V_KOFF))
        a.salu('s_mul_i32', s(S_KB), s(S_HEAD), HEAD_BYTES)
        a.salu('s_lshl_b32', s(S_T0), s(S_DS), 7)
        a.salu('s_add_u32', s(S_KB), s(S_KB), s(S_T0))
        a.salu('s_mul_i32', s(S_T0), s(S_WAVE), 64 * ROW)
        a.salu('s_add_u32', s(S_KB), s(S_KB), s(S_T0))
        if opt.rot:
            a.salu('s_and_b32', s(S_P), s(S_HEAD), 3)
            a.salu('s_lshl_b32', s(S_P), s(S_P), 1)
            if isV: a.salu('s_add_u32', s(S_P), s(S_P), 1)
        else:
            a.salu('s_mov_b32', s(S_P), 0)
        a.salu('s_mov_b32', s(S_PE), s(S_P))
        st = {'k': 0, 'e': 0, 'esetup': False}
        def e_setup():
            st['esetup'] = True
            a.salu('s_lshl_b32', s(S_EB), s(S_WAVE), 7)
            a.salu('s_lshl_b32', s(S_LB), s(S_WAVE), 13)
            a.valu('v_and_b32', v(t2), 7, L)
            a.valu('v_xor_b32', v(t2), v(t2), v(t1))
            a.valu('v_lshrrev_b32', v(t3), 3, L)
            a.valu('v_lshlrev_b32', v(t3), 12, v(t3))
            a.valu('v_lshl_add_u32', v(t2), v(t2), 4, v(t3))
            a.valu('v_xor_b32', v(t3), 64, v(t2))
            if not isV:
                a.salu('s_lshl_b32', s(S_T0), s(S_WAVE), 16)
            else:
                a.salu('s_lshr_b32', s(S_T0), s(S_WAVE), 1)
                a.salu('s_lshl_b32', s(S_T0), s(S_T0), 17)
            for j in range(8):
                if not isV: hi, lo = (j >> 1) * 16 * 4096, 8 * (j & 1) * 4096
                else: hi, lo = (j >> 2) * 32 * 4096, (8 * ((j >> 1) & 1) + 16 * (j & 1)) * 4096
                a.salu('s_xor_b32', s(S_T1), s(S_T0), hex(hi))
                assert lo - (j % GS) * 1024 >= 0
                if lo: a.salu('s_add_u32', s(S_T1), s(S_T1), hex(lo - (j % GS) * 1024))
                a.valu('v_add_u32', v(V_EOFF + j), s(S_T1), v(t3 if j & 1 else t2))
        def c_setup():
            a.valu('v_lshrrev_b32', v(t2), 1, v(t0))
            a.valu('v_xor_b32', v(t2), v(t2), v(t1))
            a.valu('v_lshlrev_b32', v(t2), 4, v(t2))
            a.valu('v_lshl_add_u32', v(t2), v(t0), 7, v(t2))
            a.valu('v_add_u32', v(V_ERD), s(S_LB), v(t2))
            a.valu('v_xor_b32', v(V_ERD + 1), 64, v(V_ERD))
            a.valu('v_add_u32', v(V_ERD + 2), hex(65536), v(V_ERD))
            a.valu('v_add_u32', v(V_ERD + 3), hex(65536), v(V_ERD + 1))
            a.salu('s_mov_b32', s(S_PLO), '0x05040100')
            a.salu('s_mov_b32', s(S_PHI), '0x07060302')
            if isV:
                a.salu('s_and_b32', s(S_T0), s(S_WAVE), 1)
                a.salu('s_cmp_eq_u32', s(S_T0), 1, nodst=True)
                a.salu('s_cselect_b32', s(S_PLO), '0x07060302', s(S_PLO))
                a.salu('s_cselect_b32', s(S_PHI), '0x05040100', s(S_PHI))
        def issueK():
            k = st['k']; st['k'] += 1
            b = buf(k)
            if k & 1 == 0:
                a.salu('s_mul_i32', s(S_KOFF), s(S_P), 256 * ROW)
                a.salu('s_add_u32', s(S_KOFF), s(S_KOFF), s(S_KB))
                a.salu('s_add_u32', s(S_P), s(S_P), 1)
                a.salu('s_and_b32', s(S_P), s(S_P), 7)
            else:
                a.salu('s_add_u32', s(S_KOFF), s(S_KOFF), 32 * ROW)
            for i in range(8):
                a.bload('buffer_load_dwordx2', T('v', b + 2 * i, 2), v(V_KOFF), srd(SRD_KV), s(S_KOFF), off=i * ROW, mods=opt.kmods)
                vm.issue(('K', k))
        def issueE():
            if not st['esetup']: e_setup()
            p = st['e']; st['e'] += 1
            a.salu('s_lshl_b32', s(S_EOFF), s(S_PE), 9)
            a.salu('s_add_u32', s(S_EOFF), s(S_EOFF), s(S_EB))
            a.salu('s_add_u32', s(S_PE), s(S_PE), 1)
            a.salu('s_and_b32', s(S_PE), s(S_PE), 7)
            for j in range(8):
                if j % GS == 0:
                    a.salu('s_add_u32', 'm0', s(S_LB), (p % 4) * 32768 + j * 1024)
                a.bload_lds('buffer_load_dwordx4', v(V_EOFF + j), srd(SRD_EF), s(S_EOFF), off=(j % GS) * 1024, mods=opt.emods)
                vm.issue(('E', p))
        toks = []
        for m in re.finditer(r'([KE])(\d*)', prog):
            toks += [m.group(1)] * int(m.group(2) or 1)
        assert toks.count('K') == 16 and toks.count('E') == 8, prog
        ti = [0]
        qtail = [0]
        def pump(done, nowait=False):
            while True:
                if ti[0] < len(toks):
                    t = toks[ti[0]]
                    if t == 'E':
                        p = st['e']; ok = p < 4 or done >= 2 * (p - 4) + 2
                    else:
                        k = st['k']; ok = k < NB or done >= k - NB + 1
                    n = 8
                elif opt.qp == 'tail' and qtail[0] < 3:
                    t = 'Q'; ok = done >= first_free + qtail[0] + 1; n = 4
                else:
                    break
                if not ok: break
                if len(vm.q) + n > opt.maxvm:
                    if nowait: break
                    need = [x for x in (('K', done), ('E', done >> 1)) if vm.has(x)]
                    if done < NCHUNK and need and vm.last(vm.q[0]) < max(vm.last(x) for x in need):
                        vm.wait(vm.q[0]); continue
                    if done < NCHUNK and (st['k'] <= done or st['e'] <= done >> 1):
                        vm.wait(vm.q[0]); continue
                    break
                if t == 'E': issueE(); ti[0] += 1
                elif t == 'K': issueK(); ti[0] += 1
                else:
                    self.q_load_piece(vm, QA, S_QOFF, qtail[0]); qtail[0] += 1
        pump(0, True)
        if not st['esetup']:
            e_setup()
        c_setup()
        self.late_setup()
        self.stamp(1)
        pump(0)
        def acc(j, t):
            if not isV: grp, z = t, j
            else: grp, z = (j & 1) + 2 * (t >> 1), (j >> 1) * 2 + (t & 1)
            return T('v', V_ACC + (grp * 4 + z) * 4, 4)
        for k in range(NCHUNK):
            b = buf(k)
            p, hf = k >> 1, k & 1
            assert st['k'] > k and st['e'] > p, ('program deadlock', prog, k)
            tags = [t for t in (('K', k), ('E', p)) if vm.has(t)]
            if tags:
                vm.wait(max(tags, key=vm.last))
            pos = p % 4
            for t in range(4):
                a.dsread('ds_read_b128', T('v', V_EF + 4 * t, 4), v(V_ERD + hf + 2 * (pos >> 1)), off=(pos & 1) * 32768 + t * 2048)
            for j in range(4):
                for m in range(4):
                    s1 = b + 2 * (2 * m) + (j >> 1)
                    s0 = b + 2 * (2 * m + 1) + (j >> 1)
                    a.valu('v_perm_b32', v(V_F + 4 * j + m), v(s0), v(s1), s(S_PHI if j & 1 else S_PLO))
            a.waitcnt(lgkm=0)
            pump(k + 1)
            if k == opt.ba: a.barrier()
            if k == opt.b0: a.barrier()
            for j in range(4):
                for t in range(4):
                    fk = T('v', V_F + 4 * j, 4)
                    fe = T('v', V_EF + 4 * t, 4)
                    A, B = (fe, fk) if isV else (fk, fe)
                    a.mfma('v_mfma_f32_16x16x32_bf16', acc(j, t), A, B, '0' if k == 0 else acc(j, t))
            if k == 7: self.stamp(2)
        return vm

    def reduce_store(self, isV, vm):
        a = self.a; opt = self.opt
        t0 = V_TMP
        L = v(V_LANE)
        self.stamp(3)
        a.valu('v_add_u32', v(t0), s(S_LB), v(V_LB))
        for d in (1, 2, 3):
            a.salu('s_xor_b32', s(S_T0), s(S_LB), d << 13)
            a.valu('v_add_u32', v(t0 + d), s(S_T0), v(V_LB))
        for d in (1, 2, 3):
            for z in range(4):
                a.dswrite('ds_write_b128', v(t0), T('v', V_ACC + (d * 4 + z) * 4, 4), off=(d >> 1) * 32768 + (d & 1) * 4096 + z * 1024)
        a.salu('s_mul_i32', s(S_WSOFF), s(S_HEAD), WS_HEAD)
        a.salu('s_lshl_b32', s(S_T0), s(S_TK), 13)
        a.salu('s_add_u32', s(S_WSOFF), s(S_WSOFF), s(S_T0))
        if not isV:
            a.salu('s_lshl_b32', s(S_T0), s(S_WAVE), 11)
            a.salu('s_add_u32', s(S_WSOFF), s(S_WSOFF), s(S_T0))
            a.salu('s_add_u32', s(S_WSOFF + 1), s(S_WSOFF), 1024)
        else:
            a.salu('s_and_b32', s(S_T0), s(S_WAVE), 1)
            a.salu('s_lshl_b32', s(S_T0), s(S_T0), 11)
            a.salu('s_add_u32', s(S_WSOFF), s(S_WSOFF), s(S_T0))
            a.salu('s_lshr_b32', s(S_T0), s(S_WAVE), 1)
            a.salu('s_lshl_b32', s(S_T0), s(S_T0), 10)
            a.salu('s_add_u32', s(S_WSOFF), s(S_WSOFF), s(S_T0))
            a.salu('s_add_u32', s(S_WSOFF + 1), s(S_WSOFF), 4096)
        a.waitcnt(lgkm=0)
        a.barrier()
        RB = 124
        for d in (1, 2, 3):
            for z in range(4):
                a.dsread('ds_read_b128', T('v', RB + ((d - 1) * 4 + z) * 4, 4), v(t0 + d), off=(d >> 1) * 32768 + (d & 1) * 4096 + z * 1024)
        a.waitcnt(lgkm=8)
        for e in range(16):
            a.valu('v_add_f32', v(V_ACC + e), v(V_ACC + e), v(RB + e))
        a.waitcnt(lgkm=0)
        for e in range(16):
            a.valu('v_add_f32', v(RB + 16 + e), v(RB + 16 + e), v(RB + 32 + e))
        for e in range(16):
            a.valu('v_add_f32', v(V_ACC + e), v(V_ACC + e), v(RB + 16 + e))
        def sm(z, i): return v(V_ACC + z * 4 + i)
        PK = V_F
        for u in range(2):
            if not isV:
                pairs = [(sm(0, 2*u), sm(1, 2*u)), (sm(2, 2*u), sm(3, 2*u)), (sm(0, 2*u+1), sm(1, 2*u+1)), (sm(2, 2*u+1), sm(3, 2*u+1))]
            else:
                pairs = [(sm(2*u, 0), sm(2*u, 1)), (sm(2*u, 2), sm(2*u, 3)), (sm(2*u+1, 0), sm(2*u+1, 1)), (sm(2*u+1, 2), sm(2*u+1, 3))]
            for m, (lo, hi) in enumerate(pairs):
                a.valu('v_cvt_pk_bf16_f32', v(PK + 4 * u + m), lo, hi)
            for m in range(4):
                a.valu('v_min_u32', v(PK + 4 * u + m), -2, v(PK + 4 * u + m))
            a.bstore('buffer_store_dwordx4', T('v', PK + 4 * u, 4), v(V_LB), srd(SRD_WS), s(S_WSOFF + u), mods='sc1')
            vm.issue('wsst')
        self.stamp(4)

    def clear_and_flag(self):
        a = self.a
        build_srd(a, SRD_WS, S_WS, 32 * WS_HEAD)
        a.valu('v_lshlrev_b32', v(V_LB), 4, v(V_LANE))
        for i in range(4): a.valu('v_mov_b32', v(P2_S + i), -1)
        a.salu('s_mul_i32', s(S_T0), s(S_HEAD), WS_HEAD)
        a.salu('s_lshl_b32', s(S_T1), s(S_TK), 13)
        a.salu('s_add_u32', s(S_T0), s(S_T0), s(S_T1))
        a.salu('s_add_u32', s(S_T1), s(S_T0), 4096)
        for i in range(8):
            a.bstore('buffer_store_dwordx4', T('v', P2_S, 4), v(V_LB), srd(SRD_WS), s(S_T0 + (i >> 2)), off=(i & 3) * 1024, mods='sc1')
    def raise_flag(self):
        a = self.a
        a.salu('s_lshl_b32', s(S_T0), s(S_TK), 5)
        a.salu('s_add_u32', s(S_T0), s(S_T0), s(S_HEAD))
        a.valu('v_mov_b32', v(P2_S + 4), 1)
        a.valu('v_mov_b32', v(P2_S + 5), 0)
        a.valu('v_cmp_eq_u32', 'vcc', 0, v(V_LANE))
        a.waitcnt(vm=0)
        a.salu('s_and_saveexec_b64', f's[{S_EX}:{S_EX+1}]', 'vcc')
        a.bstore('buffer_store_byte', v(P2_S + 4), v(P2_S + 5), srd(SRD_DBG), s(S_T0), off=64, mods='sc1')
        a.salu('s_mov_b64', 'exec', f's[{S_EX}:{S_EX+1}]')

    def wait_flags(self):
        a = self.a
        top = self.lbl('FL'); out = self.lbl('FLX')
        a.valu('v_min_u32', v(P2_T), 5, v(V_LANE))
        a.valu('v_lshlrev_b32', v(P2_T), 5, v(P2_T))
        a.salu('s_mov_b32', s(S_T2), hex(self.opt.spin))
        a.salu('s_mov_b64', f's[{S_EX}:{S_EX+1}]', 'exec')
        a.salu('s_mov_b64', 'exec', 63)
        a.label(top)
        a.bload('buffer_load_ubyte', v(P2_T + 2), v(P2_T), srd(SRD_DBG), s(S_HEAD), off=64, mods='sc1')
        a.waitcnt(vm=0)
        a.valu('v_cmp_ne_u32', 'vcc', 1, v(P2_T + 2))
        a.branch('s_cbranch_vccz', out)
        a.other('s_sleep 40')
        a.salu('s_sub_u32', s(S_T2), s(S_T2), 1)
        a.salu('s_cmp_lg_u32', s(S_T2), 0, nodst=True)
        a.branch('s_cbranch_scc1', top)
        a.label(out)
        a.salu('s_mov_b64', 'exec', f's[{S_EX}:{S_EX+1}]')

    def cheap_poll(self):
        a = self.a
        top = self.lbl('PL'); out = self.lbl('PLX')
        a.valu('v_min_u32', v(P2_T), 5, v(V_LANE))
        a.valu('v_lshlrev_b32', v(P2_T), 13, v(P2_T))
        a.salu('s_mov_b32', s(S_T2), hex(self.opt.spin))
        a.salu('s_mov_b64', f's[{S_EX}:{S_EX+1}]', 'exec')
        a.salu('s_mov_b64', 'exec', 63)
        a.label(top)
        a.bload('buffer_load_dword', v(P2_T + 2), v(P2_T), srd(SRD_WS), s(S_WSOFF), off=1024, mods='sc1')
        a.waitcnt(vm=0)
        if self.opt.pollall:
            a.valu('v_cmp_eq_u32', 'vcc', -1, v(P2_T + 2))
            a.branch('s_cbranch_vccz', out)
        else:
            a.valu('v_cmp_ne_u32', 'vcc', -1, v(P2_T + 2))
            a.branch('s_cbranch_vccnz', out)
        a.other(f's_sleep {self.opt.pollsleep}')
        a.salu('s_sub_u32', s(S_T2), s(S_T2), 1)
        a.salu('s_cmp_lg_u32', s(S_T2), 0, nodst=True)
        a.branch('s_cbranch_scc1', top)
        a.label(out)
        a.salu('s_mov_b64', 'exec', f's[{S_EX}:{S_EX+1}]')

    def sweep(self, vm, mid=None):
        a = self.a
        def ld(tk):
            a.salu('s_add_u32', s(S_T0), s(S_WSOFF), tk * 8192)
            for u in range(2):
                a.bload('buffer_load_dwordx4', T('v', P2_ST + 8 * tk + 4 * u, 4), v(V_LB), srd(SRD_WS), s(S_T0), off=u * 1024, mods='sc1')
        for tk in range(6):
            ld(tk); vm.issue('sw'); vm.issue('sw')
        if mid: mid()
        a.salu('s_mov_b32', s(S_MASK), 63)
        a.salu('s_mov_b32', s(S_T2), hex(self.opt.spin))
        top = self.lbl('SW'); out = self.lbl('SWX')
        a.label(top)
        a.waitcnt(vm=0)
        vm.q = []
        a.salu('s_add_u32', s(S_CNT), s(S_CNT), 1)
        for tk in range(6):
            nxt = self.lbl('SWN')
            a.salu('s_bitcmp1_b32', s(S_MASK), tk, nodst=True)
            a.branch('s_cbranch_scc0', nxt)
            b = P2_ST + 8 * tk
            m = v(P2_T)
            a.valu('v_max3_u32', m, v(b), v(b + 1), v(b + 2))
            a.valu('v_max3_u32', m, m, v(b + 3), v(b + 4))
            a.valu('v_max3_u32', m, m, v(b + 5), v(b + 6))
            a.valu('v_max_u32', m, m, v(b + 7))
            a.valu('v_cmp_eq_u32', 'vcc', -1, m)
            again = self.lbl('SWA')
            a.branch('s_cbranch_vccnz', again)
            for u in range(2):
                if tk < 3:
                    a.dswrite('ds_write_b128', v(V_KA), T('v', b + 4 * u, 4), off=tk * 4096 + u * 512)
                else:
                    a.dswrite('ds_write_b128', v(V_VA + tk - 3), T('v', b + 4 * u, 4), off=u * 2048)
            a.salu('s_bitset0_b32', s(S_MASK), tk)
            a.branch('s_branch', nxt)
            a.label(again)
            ld(tk)
            a.label(nxt)
        a.salu('s_cmp_eq_u32', s(S_MASK), 0, nodst=True)
        a.branch('s_cbranch_scc1', out)
        a.salu('s_sub_u32', s(S_T2), s(S_T2), 1)
        a.salu('s_cmp_lg_u32', s(S_T2), 0, nodst=True)
        a.branch('s_cbranch_scc1', top)
        a.waitcnt(vm=0)
        a.label(out)
        a.waitcnt(lgkm=0)

    def phase2(self, Q, soff):
        a = self.a; opt = self.opt
        MF = 'v_mfma_f32_32x32x16_bf16'
        seq = [(s_, mt) for s_ in range(12) for mt in range(2)]
        NF = 4
        def rd(i, off):
            a.dsread('ds_read_b128', T('v', P2_FR + 4 * (i % NF), 4), v(V_LBK), off=off)
        def koff(i): s_, mt = seq[i]; return (mt * 12 + s_) * 1024
        for i in range(NF - 1): rd(i, koff(i))
        for i, (s_, mt) in enumerate(seq):
            if i + NF - 1 < len(seq):
                rd(i + NF - 1, koff(i + NF - 1))
                a.waitcnt(lgkm=NF - 1)
            else:
                a.waitcnt(lgkm=len(seq) - 1 - i)
            acc = T('v', P2_S + 16 * mt, 16)
            a.mfma(MF, acc, T('v', P2_FR + 4 * (i % NF), 4), T('v', Q + 4 * s_, 4), '0' if s_ == 0 else acc)
        seq2 = [(t, s_) for t in range(6) for s_ in range(4)]
        def voff(i): t, s_ = seq2[i]; return 24576 + (t * 4 + s_) * 1024
        x = [v(P2_S + i) for i in range(32)]
        m, t = v(P2_T), v(P2_T + 1)
        a.valu('v_max3_f32', m, x[0], x[1], x[2])
        for i in range(3, 31, 2):
            a.valu('v_max3_f32', m, m, x[i], x[i + 1])
        a.valu('v_max_f32', m, m, x[31])
        for i in range(NF - 1): rd(i, voff(i))
        a.valu('v_mov_b32', t, m)
        a.valu('v_permlane32_swap_b32', m, t)
        a.valu('v_max_f32', m, m, t)
        c = (192 ** -0.5) * math.log2(math.e)
        cbits = struct.unpack('<I', struct.pack('<f', c))[0]
        a.salu('s_mov_b32', s(S_SCALE), hex(cbits))
        a.valu('v_mul_f32', m, s(S_SCALE), m)
        for i in range(32):
            a.valu('v_fma_f32', x[i], x[i], s(S_SCALE), f'-{m}')
        for i in range(32):
            a.valu('v_exp_f32', x[i], x[i])
        l0, l1 = v(P2_T + 2), v(P2_T + 3)
        a.valu('v_add_f32', l0, x[0], x[1])
        a.valu('v_add_f32', l1, x[2], x[3])
        for i in range(4, 32, 2):
            a.valu('v_add_f32', l0, l0, x[i])
            a.valu('v_add_f32', l1, l1, x[i + 1])
        a.valu('v_add_f32', l0, l0, l1)
        a.valu('v_mov_b32', t, l0)
        a.valu('v_permlane32_swap_b32', l0, t)
        a.valu('v_add_f32', l0, l0, t)
        a.valu('v_rcp_f32', l0, l0)
        for i in range(32):
            a.valu('v_mul_f32', x[i], x[i], l0)
        for i in range(16):
            a.valu('v_cvt_pk_bf16_f32', v(P2_P + i), x[2 * i], x[2 * i + 1])
        for i, (tt, s_) in enumerate(seq2):
            if i + NF - 1 < len(seq2):
                rd(i + NF - 1, voff(i + NF - 1))
                a.waitcnt(lgkm=NF - 1)
            else:
                a.waitcnt(lgkm=len(seq2) - 1 - i)
            acc = T('v', P2_O + 16 * tt, 16)
            a.mfma(MF, acc, T('v', P2_P + 4 * s_, 4), T('v', P2_FR + 4 * (i % NF), 4), '0' if s_ == 0 else acc)
        for i in range(16):
            pk = P2_PKO + 4 * (i % 8)
            if i == 8 and False: pass
            for k in range(3):
                a.valu('v_cvt_pk_bf16_f32', v(pk + k), v(P2_O + 16 * (2 * k) + i), v(P2_O + 16 * (2 * k + 1) + i))
            a.bstore('buffer_store_dwordx3', T('v', pk, 3), v(V_OOFF), srd(SRD_O), s(soff + (i >> 2)), off=(i & 3) * ROW, mods=opt.omods)

    def build(self):
        a = self.a; opt = self.opt
        self.stamp(0)
        self.prologue('L_END')
        a.salu('s_cmp_ge_u32', s(S_TK), 6, nodst=True)
        a.branch('s_cbranch_scc1', 'L_NP')
        a.salu('s_cmp_ge_u32', s(S_WAVE), 4, nodst=True)
        a.branch('s_cbranch_scc1', 'L_HELP')
        progs = opt.prog.split(',')
        a.salu('s_cmp_ge_u32', s(S_TK), 3, nodst=True)
        a.branch('s_cbranch_scc1', 'L_PV')
        for isV in (False, True):
            nm = 'V' if isV else 'K'
            if isV: a.label('L_PV')
            vms = []
            if len(progs) == 2:
                a.salu('s_add_u32', s(S_T0), s(S_HEAD), s(S_TK))
                a.salu('s_bitcmp1_b32', s(S_T0), 0, nodst=True)
                a.branch('s_cbranch_scc1', f'L_P{nm}1')
            for pi, prog in enumerate(progs):
                if pi: a.label(f'L_P{nm}{pi}')
                vm = self.phase1(isV, prog)
                vms.append(list(vm.q))
                if pi + 1 < len(progs): a.branch('s_branch', f'L_R{nm}')
            assert all(x == vms[0] for x in vms), vms
            if len(progs) > 1: a.label(f'L_R{nm}')
            self.reduce_store(isV, vm)
            if not isV: a.branch('s_branch', 'L_PJ')
        a.label('L_PJ')
        if opt.qp == 'store': self.q_load(vm, QA, S_QOFF)
        if opt.qp in ('tail', 'store'):
            self.q_convert(vm, QA)
        a.barrier()
        self.stamp(6)
        a.salu('s_cmp_eq_u32', s(S_NT), 0, nodst=True)
        a.branch('s_cbranch_scc1', 'L_FIN')
        if opt.qp == 'b3':
            self.q_load(vm, QA, S_QOFF)
            self.q_convert(vm, QA)
            self.stamp(7)
        a.branch('s_branch', 'L_P2A')
        a.label('L_HELP')
        vm = VM(a)
        if opt.ba < 0:
            a.salu('s_cmp_eq_u32', s(S_WAVE), 4, nodst=True)
            a.branch('s_cbranch_scc0', 'L_H0')
            self.clear_and_flag()
            a.label('L_H0')
        self.late_setup()
        self.sweep_setup()
        if opt.ba >= 0: a.barrier()
        a.salu('s_cmp_eq_u32', s(S_WAVE), 4, nodst=True)
        a.branch('s_cbranch_scc0', 'L_H1')
        self.raise_flag()
        a.label('L_H1')
        self.stamp(1)
        if opt.qh == 'start':
            self.q_load(vm, QA, S_QOFF)
            self.q_convert(vm, QA)
        a.barrier()
        self.stamp(2)
        a.salu('s_cmp_eq_u32', s(S_WAVE), 5, nodst=True)
        a.branch('s_cbranch_scc0', 'L_H2')
        self.wait_flags()
        a.label('L_H2')
        if opt.qh == 'b0':
            self.q_load(vm, QA, S_QOFF)
        self.stamp(3)
        a.barrier()
        self.stamp(4)
        self.sweep(vm, mid=(lambda: self.q_convert(vm, QA)) if opt.qh == 'b0' else None)
        self.stamp(5)
        a.barrier()
        self.stamp(6)
        a.branch('s_branch', 'L_P2A')
        a.label('L_NP')
        vm = VM(a)
        if opt.warm:
            a.valu('v_lshlrev_b32', v(P2_T), 4, v(V_LANE))
            a.salu('s_and_b32', s(S_T0), s(S_HEAD), 3)
            a.salu('s_lshl_b32', s(S_T0), s(S_T0), 16)
            a.salu('s_lshl_b32', s(S_T1), s(S_WAVE), 13)
            a.salu('s_add_u32', s(S_T0), s(S_T0), s(S_T1))
            a.salu('s_add_u32', s(S_T1), s(S_T0), 4096)
            for i in range(8):
                a.bload('buffer_load_dwordx4', T('v', 28 + 4 * i, 4), v(P2_T), srd(SRD_EF), s(S_T0 + (i >> 2)), off=(i & 3) * 1024)
                vm.issue('warm')
        self.late_setup()
        self.sweep_setup()
        self.stamp(1)
        self.q_load(vm, QA, S_QOFF)
        if opt.A < 8:
            a.salu('s_cmp_lt_u32', s(S_NT), 2, nodst=True)
            a.branch('s_cbranch_scc1', 'L_N1')
            vm2 = VM(a); vm2.q = list(vm.q)
            self.q_load(vm2, QB, S_QOFF2)
            self.q_convert(vm2, QA)
            self.q_convert(vm2, QB)
            a.branch('s_branch', 'L_N2')
            a.label('L_N1')
        self.q_convert(vm, QA)
        if opt.A < 8: a.label('L_N2')
        self.stamp(2)
        a.salu('s_cmp_eq_u32', s(S_WAVE), 4, nodst=True)
        a.branch('s_cbranch_scc0', 'L_N4')
        self.wait_flags()
        a.label('L_N4')
        a.barrier()
        a.salu('s_cmp_lt_u32', s(S_WAVE), 4, nodst=True)
        a.branch('s_cbranch_scc1', 'L_N3')
        self.stamp(3)
        self.cheap_poll()
        self.stamp(4)
        self.sweep(VM(a))
        self.stamp(5)
        a.label('L_N3')
        a.barrier()
        self.stamp(6)
        if opt.A < 8:
            a.salu('s_cmp_lt_u32', s(S_NT), 2, nodst=True)
            a.branch('s_cbranch_scc1', 'L_P2A')
            self.phase2(QB, S_QOFF2)
            self.stamp(7)
        a.label('L_P2A')
        self.phase2(QA, S_QOFF)
        a.label('L_FIN')
        self.stamp_out()
        a.label('L_END')
        a.other('s_endpgm')
        kn = NAME + '_kernel'
        out = HEADER
        out += f'; @launch grid=(256,1,1) block=(512,1,1) lds={LDS_BYTES}\n'
        out += '.amdgcn_target "amdgcn-amd-amdhsa--gfx950"\n.text\n'
        out += f'.globl {kn}\n.p2align 8\n.type {kn},@function\n{kn}:\n' + a.text()
        out += f'''.section .rodata,"a"
.p2align 6
.amdhsa_kernel {kn}
  .amdhsa_next_free_vgpr 256
  .amdhsa_next_free_sgpr 102
  .amdhsa_accum_offset 256
  .amdhsa_group_segment_fixed_size 0
  .amdhsa_kernarg_size 64
  .amdhsa_user_sgpr_count 2
  .amdhsa_user_sgpr_kernarg_segment_ptr 1
  .amdhsa_system_sgpr_workgroup_id_x 1
.end_amdhsa_kernel
'''
        return out

def main():
    ap = argparse.ArgumentParser()
    ap.add_argument('--kmods', default='nt')
    ap.add_argument('--emods', default='')
    ap.add_argument('--qmods', default='nt')
    ap.add_argument('--omods', default='nt')
    ap.add_argument('--nbuf', type=int, default=6)
    ap.add_argument('--maxvm', type=int, default=63)
    ap.add_argument('--rot', type=int, default=1)
    ap.add_argument('--prog', default='K4E4K10E4K2')
    ap.add_argument('--A', type=int, default=8)
    ap.add_argument('--b0', type=int, default=10)
    ap.add_argument('--qp', default='b3')
    ap.add_argument('--ba', type=int, default=0)
    ap.add_argument('--qh', default='b0')
    ap.add_argument('--warm', type=int, default=1)
    ap.add_argument('--spin', type=int, default=100000)
    ap.add_argument('--pollall', type=int, default=0)
    ap.add_argument('--pollsleep', type=int, default=8)
    ap.add_argument('--stamps', type=int, default=0)
    ap.add_argument('-o', default='cdna_kernels/' + NAME + '.s')
    opt = ap.parse_args()
    open(opt.o, 'w').write(G(opt).build())

if __name__ == '__main__':
    main()
```

```python
import sys, math, argparse, struct, re
from asmlib import Asm, R, T

NAME = 'standalone__low_rank_proj_linformer__prompt'
HEADER = open('cdna_kernels/' + NAME + '.s.ref').read().split('; Override launch')[0]

TENSOR_BYTES = 25165824
HEAD_BYTES = 786432
ROW = 384
WS_HEAD = 49152
NCHUNK = 16

S_Q, S_K, S_V, S_E, S_F, S_O, S_DBG, S_WS = 4, 6, 8, 10, 12, 14, 16, 18
SRD_Q, SRD_KV, SRD_EF, SRD_O, SRD_WS, SRD_DBG = 20, 24, 28, 32, 36, 40
S_WAVE, S_HEAD, S_TK = 44, 45, 47
S_PLO, S_PHI = 48, 49
S_KOFF, S_EOFF = 50, 51
S_T0, S_T1, S_T2, S_T3 = 52, 53, 54, 55
S_QOFF = 56
S_WSOFF = 60
S_CNT = 62
S_SCALE = 63
S_KB, S_EB, S_P = 64, 65, 66
S_LB, S_PE = 67, 68
S_DS = 69
S_MASK = 70
S_NT = 71
S_QOFF2 = 72
S_EX = 76
SRD_ST = 80
S_ST = 84
NSTAMP = 9
STAMP_OFF = 0x4000000

L_KP = 65536
L_SCR = 131072
LDS_BYTES = 163840

V_LANE = 1
V_KOFF = 3
V_EOFF = 4
V_ERD = 12
V_TMP = 16
V_F = 28
V_EF = 44
V_ACC = 60
BUFS = [172, 188, 204, 124, 140, 156, 220]
P2_T = 2
P2_S = 12
P2_P = 44
P2_FR = 60
P2_O = 76
QA = 172
QB = 76
P2_ST = 12
P2_PKO = 12
VP = 236
V_QG, V_QW, V_QR, V_OOFF, V_LB, V_LBK, V_KA, V_VA = VP, VP + 1, VP + 3, VP + 7, VP + 8, VP + 9, VP + 10, VP + 11

def srd(n): return f's[{n}:{n+3}]'
def v(n): return f'v{n}'
def s(n): return f's{n}'

class VM:
    def __init__(self, a): self.a = a; self.q = []
    def issue(self, tag): self.q.append(tag)
    def last(self, tag): return max(i for i, t in enumerate(self.q) if t == tag)
    def wait(self, tag):
        idx = self.last(tag)
        self.a.waitcnt(vm=len(self.q) - 1 - idx)
        self.q = self.q[idx + 1:]
    def has(self, tag): return tag in self.q

def build_srd(a, d, p, nbytes):
    a.salu('s_mov_b32', s(d), s(p))
    a.salu('s_mov_b32', s(d + 1), s(p + 1))
    a.salu('s_mov_b32', s(d + 2), hex(nbytes))
    a.salu('s_mov_b32', s(d + 3), '0x00020000')

class G:
    def __init__(self, opt):
        self.opt = opt
        self.a = Asm()
        self.uid = 0
        self.inprod = False
    def lbl(self, base):
        self.uid += 1
        return f'L_{base}_{self.uid}'
    def stamp(self, i, fine=False):
        if not self.opt.stamps: return
        if self.opt.pst and self.inprod and not fine and 0 < i < NSTAMP - 1: return
        if self.opt.p2st and not fine and 0 < i < 6: return
        a = self.a
        a.smem(f's_memrealtime s[{S_ST+2*i}:{S_ST+2*i+1}]', R('s', S_ST + 2 * i, 2))
        a.waitcnt(lgkm=0)
    def stamp_out(self):
        if not self.opt.stamps: return
        a = self.a
        self.stamp(NSTAMP - 1)
        if self.opt.stamps == 3:
            k = int(self.opt.enc[1:]); role = self.opt.enc[0]
            a.salu('s_sub_u32', s(S_T0), s(S_ST + 2 * k), s(S_ST))
            a.salu('s_cmp_eq_u32', s(S_ST + 2 * k), 0, nodst=True)
            a.salu('s_cselect_b32', s(S_T0), 0, s(S_T0))
            if role in 'ph':
                a.salu('s_cmp_lt_u32', s(S_TK), 6, nodst=True)
                a.salu('s_cselect_b32', s(S_T0), s(S_T0), 0)
                a.salu('s_cmp_lt_u32', s(S_WAVE), 4, nodst=True)
                if role == 'p': a.salu('s_cselect_b32', s(S_T0), s(S_T0), 0)
                else: a.salu('s_cselect_b32', s(S_T0), 0, s(S_T0))
            if role == 'n':
                a.salu('s_cmp_lt_u32', s(S_TK), 6, nodst=True)
                a.salu('s_cselect_b32', s(S_T0), 0, s(S_T0))
            a.salu('s_add_u32', s(S_T0), s(S_T0), 4000)
            a.label('L_ENC')
            a.other('s_sleep 4')
            a.smem(f's_memrealtime s[{S_ST+2}:{S_ST+3}]', R('s', S_ST + 2, 2))
            a.waitcnt(lgkm=0)
            a.salu('s_sub_u32', s(S_T1), s(S_ST + 2), s(S_ST))
            a.salu('s_cmp_lt_u32', s(S_T1), s(S_T0), nodst=True)
            a.branch('s_cbranch_scc1', 'L_ENC')
            return
        if self.opt.stamps == 2:
            a.salu('s_and_b32', s(S_T0), s(S_WAVE), 3)
            a.salu('s_cmp_eq_u32', s(S_T0), 0, nodst=True)
            a.branch('s_cbranch_scc0', 'L_END')
            a.salu('s_cmp_lt_u32', s(S_TK), 6, nodst=True)
            a.salu('s_cselect_b32', s(S_T1), -1, 0)
            a.salu('s_cmp_eq_u32', s(S_WAVE), 0, nodst=True)
            a.salu('s_cselect_b32', s(S_T1), s(S_T1), 0)
            a.salu('s_cselect_b32', s(S_T2), 0, -1)
            slots = [(0, 0, None), (0, 1, None), (3, 0, S_T1), (3, 1, S_T1), (4, 0, S_T1), (5, 0, S_T2), (5, 1, S_T2), (8, 0, None), (8, 1, None),
                     (2, 0, S_T1), (2, 1, S_T1), (1, 0, S_T1), (1, 1, S_T1), (6, 0, None), (6, 1, None)]
            a.valu('v_mov_b32', v(3), 0)
            for i, (st_, inv, msk) in enumerate(slots):
                if inv: a.salu('s_not_b32', s(S_T3), s(S_ST + 2 * st_))
                else: a.salu('s_mov_b32', s(S_T3), s(S_ST + 2 * st_))
                if msk: a.salu('s_and_b32', s(S_T3), s(S_T3), s(msk))
                a.other(f's_nop 1')
                a.valu('v_writelane_b32', v(3), s(S_T3), i, rmw=True)
            a.valu('v_lshlrev_b32', v(2), 2, v(V_LANE))
            a.salu('s_mov_b64', 'exec', '0xffff')
            a.bstore('buffer_atomic_umax', v(3), v(2), srd(SRD_DBG), 0, mods='sc1')
            return
        a.salu('s_lshl_b32', s(S_T0), 's2', 3)
        a.salu('s_add_u32', s(S_T0), s(S_T0), s(S_WAVE))
        a.salu('s_lshl_b32', s(S_T0), s(S_T0), 6)
        a.salu('s_add_u32', s(S_T0), s(S_T0), hex(STAMP_OFF))
        for i in range(NSTAMP):
            a.valu('v_mov_b32', v(220 + i), s(S_ST + 2 * i))
        a.salu('s_getreg_b32', s(S_T1), 'hwreg(HW_REG_XCC_ID)')
        a.salu('s_getreg_b32', s(S_T2), 'hwreg(HW_REG_HW_ID)')
        a.valu('v_mov_b32', v(220 + 9), s(S_T1))
        a.valu('v_mov_b32', v(220 + 10), s(S_T2))
        a.valu('v_mov_b32', v(220 + 11), s(S_CNT))
        a.valu('v_mov_b32', v(2), 0)
        a.valu('v_cmp_eq_u32', 'vcc', 0, v(V_LANE))
        a.salu('s_and_saveexec_b64', f's[{S_EX}:{S_EX+1}]', 'vcc')
        for k in range(3):
            a.bstore('buffer_store_dwordx4', T('v', 220 + 4 * k, 4), v(2), srd(SRD_ST), s(S_T0), off=16 * k)

    def prologue(self, end):
        a = self.a
        a.salu('s_cmp_ge_u32', 's2', 256, nodst=True)
        a.branch('s_cbranch_scc1', end)
        a.smem('s_load_dwordx16 s[4:19], s[0:1], 0', R('s', 4, 16))
        a.valu('v_lshrrev_b32', 'v2', 6, 'v0')
        a.valu('v_and_b32', v(V_LANE), 63, 'v0')
        a.valu('v_readfirstlane_b32', s(S_WAVE), 'v2')
        a.salu('s_and_b32', s(S_T0), 's2', 7)
        a.salu('s_lshr_b32', s(S_T1), 's2', 3)
        a.salu('s_and_b32', s(S_T2), s(S_T1), 3)
        a.salu('s_lshl_b32', s(S_HEAD), s(S_T0), 2)
        a.salu('s_add_u32', s(S_HEAD), s(S_HEAD), s(S_T2))
        a.salu('s_lshr_b32', s(S_TK), s(S_T1), 2)
        a.salu('s_mov_b32', s(S_CNT), 0)
        if self.opt.stamps:
            for i in range(1, NSTAMP): a.salu('s_mov_b32', s(S_ST + 2 * i), 0)
        a.waitcnt(lgkm=0)
        a.salu('s_cmp_eq_u32', s(S_TK), 6, nodst=True)
        a.salu('s_cselect_b32', s(S_T0), 0, s(S_TK))
        a.salu('s_cmp_lt_u32', s(S_T0), 3, nodst=True)
        a.salu('s_cselect_b32', s(SRD_KV), s(S_K), s(S_V))
        a.salu('s_cselect_b32', s(SRD_KV + 1), s(S_K + 1), s(S_V + 1))
        a.salu('s_cselect_b32', s(SRD_EF), s(S_E), s(S_F))
        a.salu('s_cselect_b32', s(SRD_EF + 1), s(S_E + 1), s(S_F + 1))
        a.salu('s_cselect_b32', s(S_T0), 0, 3)
        a.salu('s_sub_u32', s(S_DS), s(S_TK), s(S_T0))
        a.salu('s_mov_b32', s(SRD_KV + 2), hex(TENSOR_BYTES))
        a.salu('s_mov_b32', s(SRD_KV + 3), '0x00020000')
        a.salu('s_mov_b32', s(SRD_EF + 2), hex(262144))
        a.salu('s_mov_b32', s(SRD_EF + 3), '0x00020000')

    def late_setup(self):
        a = self.a; opt = self.opt
        build_srd(a, SRD_Q, S_Q, TENSOR_BYTES)
        build_srd(a, SRD_O, S_O, TENSOR_BYTES)
        build_srd(a, SRD_WS, S_WS, 32 * WS_HEAD)
        build_srd(a, SRD_DBG, S_DBG, 256)
        if opt.stamps: build_srd(a, SRD_ST, S_WS, 268435456)
        t0, t1, t2, t3 = V_TMP + 4, V_TMP + 5, V_TMP + 6, V_TMP + 7
        L = v(V_LANE)
        a.valu('v_lshrrev_b32', v(t0), 3, L)
        a.valu('v_and_b32', v(t1), 7, L)
        a.valu('v_mul_u32_u24', v(V_QG), ROW, v(t0))
        a.valu('v_lshl_add_u32', v(V_QG), v(t1), 4, v(V_QG))
        a.salu('s_lshl_b32', s(S_T0), s(S_WAVE), 12)
        a.salu('s_add_u32', s(S_T0), s(S_T0), L_SCR)
        a.valu('v_lshrrev_b32', v(t2), 4, L)
        a.valu('v_xor_b32', v(t2), v(t2), v(t1))
        a.valu('v_lshlrev_b32', v(t2), 4, v(t2))
        a.valu('v_lshl_add_u32', v(t2), v(t0), 7, v(t2))
        a.valu('v_add_u32', v(V_QW), s(S_T0), v(t2))
        a.valu('v_xor_b32', v(V_QW + 1), 64, v(V_QW))
        a.valu('v_and_b32', v(t0), 31, L)
        a.valu('v_lshrrev_b32', v(t1), 5, L)
        a.valu('v_bfe_u32', v(t2), L, 1, 3)
        a.valu('v_xor_b32', v(t2), v(t2), v(t1))
        a.valu('v_lshlrev_b32', v(t2), 4, v(t2))
        a.valu('v_lshl_add_u32', v(t2), v(t0), 7, v(t2))
        a.valu('v_add_u32', v(V_QR), s(S_T0), v(t2))
        for k in (1, 2, 3):
            a.valu('v_xor_b32', v(V_QR + k), 32 * k, v(V_QR))
        a.valu('v_mul_u32_u24', v(V_OOFF), 12, v(t0))
        a.valu('v_mul_u32_u24', v(t2), 4 * ROW, v(t1))
        a.valu('v_add_u32', v(V_OOFF), v(V_OOFF), v(t2))
        a.valu('v_lshlrev_b32', v(V_LB), 4, L)
        a.valu('v_add_u32', v(V_LBK), hex(L_KP), v(V_LB))
        A = opt.A; B = (64 - 6 * A) // 2
        a.salu('s_cmp_lt_u32', s(S_TK), 6, nodst=True)
        a.salu('s_cselect_b32', s(S_T0), 4, 0)
        a.salu('s_xor_b32', s(S_T0), s(S_T0), s(S_WAVE))
        a.salu('s_mul_i32', s(S_T1), s(S_TK), A)
        a.salu('s_cmp_eq_u32', s(S_TK), 7, nodst=True)
        a.salu('s_cselect_b32', s(S_T1), 6 * A + B, s(S_T1))
        a.salu('s_cmp_lt_u32', s(S_TK), 6, nodst=True)
        a.salu('s_cselect_b32', s(S_T2), A, B)
        a.salu('s_cmp_lt_u32', s(S_T0), s(S_T2), nodst=True)
        a.salu('s_cselect_b32', s(S_NT), 1, 0)
        a.salu('s_add_u32', s(S_T3), s(S_T0), 8)
        a.salu('s_cmp_lt_u32', s(S_T3), s(S_T2), nodst=True)
        a.salu('s_cselect_b32', s(S_NT), 2, s(S_NT))
        a.salu('s_add_u32', s(S_T0), s(S_T0), s(S_T1))
        a.salu('s_mul_i32', s(S_T0), s(S_T0), 32 * ROW)
        a.salu('s_mul_i32', s(S_QOFF), s(S_HEAD), HEAD_BYTES)
        a.salu('s_add_u32', s(S_QOFF), s(S_QOFF), s(S_T0))
        for k in (1, 2, 3):
            a.salu('s_add_u32', s(S_QOFF + k), s(S_QOFF), k * 8 * ROW)
        for k in range(4):
            a.salu('s_add_u32', s(S_QOFF2 + k), s(S_QOFF + k), 8 * 32 * ROW)

    def sweep_setup(self):
        a = self.a
        c, g, t0 = V_TMP, V_TMP + 1, V_TMP + 2
        L = v(V_LANE)
        a.valu('v_and_b32', v(c), 15, L)
        a.valu('v_lshrrev_b32', v(g), 4, L)
        a.salu('s_and_b32', s(S_T0), s(S_WAVE), 3)
        a.salu('s_lshr_b32', s(S_T2), s(S_T0), 1)
        a.salu('s_mul_i32', s(S_T2), s(S_T2), 12288)
        a.salu('s_and_b32', s(S_T3), s(S_T0), 1)
        a.salu('s_lshl_b32', s(S_T3), s(S_T3), 8)
        a.salu('s_add_u32', s(S_T2), s(S_T2), s(S_T3))
        a.salu('s_add_u32', s(S_T2), s(S_T2), L_KP)
        a.valu('v_lshlrev_b32', v(t0), 10, v(g))
        a.valu('v_lshl_add_u32', v(t0), v(c), 4, v(t0))
        a.valu('v_add_u32', v(V_KA), s(S_T2), v(t0))
        a.valu('v_lshlrev_b32', v(t0), 9, v(g))
        a.valu('v_add_u32', v(t0), hex(L_KP + 24576), v(t0))
        a.valu('v_lshlrev_b32', v(c), 2, v(c))
        a.valu('v_add_u32', v(c), s(S_T0), v(c))
        for ds in range(3):
            d, q, r = V_TMP + 4, V_TMP + 5, V_TMP + 6
            a.valu('v_add_u32', v(d), 64 * ds, v(c))
            a.valu('v_mul_u32_u24', v(q), 171, v(d))
            a.valu('v_lshrrev_b32', v(q), 10, v(q))
            a.valu('v_mul_u32_u24', v(r), 6, v(q))
            a.valu('v_sub_u32', v(r), v(d), v(r))
            a.valu('v_lshl_add_u32', v(V_VA + ds), v(r), 12, v(t0))
            a.valu('v_lshl_add_u32', v(V_VA + ds), v(q), 4, v(V_VA + ds))
        a.salu('s_mul_i32', s(S_WSOFF), s(S_HEAD), WS_HEAD)
        a.salu('s_lshl_b32', s(S_T2), s(S_T0), 11)
        a.salu('s_add_u32', s(S_WSOFF), s(S_WSOFF), s(S_T2))

    def q_load_piece(self, vm, base, soff, c):
        a = self.a
        for m in range(4):
            a.bload('buffer_load_dwordx4', T('v', base + 16 * c + 4 * m, 4), v(V_QG), srd(SRD_Q), s(soff + m), off=128 * c, mods=self.opt.qmods)
            vm.issue(('q', base, c))
    def q_load(self, vm, base, soff):
        for c in range(3): self.q_load_piece(vm, base, soff, c)
    def q_convert(self, vm, base):
        a = self.a
        for c in range(3):
            if vm.has(('q', base, c)): vm.wait(('q', base, c))
            for m in range(4):
                a.dswrite('ds_write_b128', v(V_QW + (m & 1)), T('v', base + 16 * c + 4 * m, 4), off=m * 1024)
            a.waitcnt(lgkm=0)
            for k in range(4):
                a.dsread('ds_read_b128', T('v', base + 16 * c + 4 * k, 4), v(V_QR + k))
            a.waitcnt(lgkm=0)

    def phase1(self, isV, prog):
        a = self.a; opt = self.opt
        vm = VM(a)
        NB = opt.nbuf
        GS = 4 if isV else 2
        L = v(V_LANE)
        t0, t1, t2, t3 = V_TMP, V_TMP + 1, V_TMP + 2, V_TMP + 3
        first_free = NCHUNK - NB
        def buf(k): return BUFS[(k - first_free) % NB]
        a.valu('v_and_b32', v(t0), 15, L)
        a.valu('v_lshrrev_b32', v(t1), 4, L)
        a.valu('v_mul_u32_u24', v(V_KOFF), 8 * ROW, v(t1))
        a.valu('v_lshl_add_u32', v(V_KOFF), v(t0), 3, v(V_KOFF))
        a.salu('s_mul_i32', s(S_KB), s(S_HEAD), HEAD_BYTES)
        a.salu('s_lshl_b32', s(S_T0), s(S_DS), 7)
        a.salu('s_add_u32', s(S_KB), s(S_KB), s(S_T0))
        a.salu('s_mul_i32', s(S_T0), s(S_WAVE), 64 * ROW)
        a.salu('s_add_u32', s(S_KB), s(S_KB), s(S_T0))
        if opt.rot:
            a.salu('s_and_b32', s(S_P), s(S_HEAD), 3)
            a.salu('s_lshl_b32', s(S_P), s(S_P), 1)
            if isV: a.salu('s_add_u32', s(S_P), s(S_P), 1)
        else:
            a.salu('s_mov_b32', s(S_P), 0)
        a.salu('s_mov_b32', s(S_PE), s(S_P))
        st = {'k': 0, 'e': 0, 'esetup': False}
        def e_setup():
            st['esetup'] = True
            a.salu('s_lshl_b32', s(S_EB), s(S_WAVE), 7)
            a.salu('s_lshl_b32', s(S_LB), s(S_WAVE), 13)
            a.valu('v_and_b32', v(t2), 7, L)
            a.valu('v_xor_b32', v(t2), v(t2), v(t1))
            a.valu('v_lshrrev_b32', v(t3), 3, L)
            a.valu('v_lshlrev_b32', v(t3), 12, v(t3))
            a.valu('v_lshl_add_u32', v(t2), v(t2), 4, v(t3))
            a.valu('v_xor_b32', v(t3), 64, v(t2))
            if not isV:
                a.salu('s_lshl_b32', s(S_T0), s(S_WAVE), 16)
            else:
                a.salu('s_lshr_b32', s(S_T0), s(S_WAVE), 1)
                a.salu('s_lshl_b32', s(S_T0), s(S_T0), 17)
            for j in range(8):
                if not isV: hi, lo = (j >> 1) * 16 * 4096, 8 * (j & 1) * 4096
                else: hi, lo = (j >> 2) * 32 * 4096, (8 * ((j >> 1) & 1) + 16 * (j & 1)) * 4096
                a.salu('s_xor_b32', s(S_T1), s(S_T0), hex(hi))
                assert lo - (j % GS) * 1024 >= 0
                if lo: a.salu('s_add_u32', s(S_T1), s(S_T1), hex(lo - (j % GS) * 1024))
                a.valu('v_add_u32', v(V_EOFF + j), s(S_T1), v(t3 if j & 1 else t2))
        def c_setup():
            a.valu('v_lshrrev_b32', v(t2), 1, v(t0))
            a.valu('v_xor_b32', v(t2), v(t2), v(t1))
            a.valu('v_lshlrev_b32', v(t2), 4, v(t2))
            a.valu('v_lshl_add_u32', v(t2), v(t0), 7, v(t2))
            a.valu('v_add_u32', v(V_ERD), s(S_LB), v(t2))
            a.valu('v_xor_b32', v(V_ERD + 1), 64, v(V_ERD))
            a.valu('v_add_u32', v(V_ERD + 2), hex(65536), v(V_ERD))
            a.valu('v_add_u32', v(V_ERD + 3), hex(65536), v(V_ERD + 1))
            a.salu('s_mov_b32', s(S_PLO), '0x05040100')
            a.salu('s_mov_b32', s(S_PHI), '0x07060302')
            if isV:
                a.salu('s_and_b32', s(S_T0), s(S_WAVE), 1)
                a.salu('s_cmp_eq_u32', s(S_T0), 1, nodst=True)
                a.salu('s_cselect_b32', s(S_PLO), '0x07060302', s(S_PLO))
                a.salu('s_cselect_b32', s(S_PHI), '0x05040100', s(S_PHI))
        def issueK():
            k = st['k']; st['k'] += 1
            b = buf(k)
            if k & 1 == 0:
                a.salu('s_mul_i32', s(S_KOFF), s(S_P), 256 * ROW)
                a.salu('s_add_u32', s(S_KOFF), s(S_KOFF), s(S_KB))
                a.salu('s_add_u32', s(S_P), s(S_P), 1)
                a.salu('s_and_b32', s(S_P), s(S_P), 7)
            else:
                a.salu('s_add_u32', s(S_KOFF), s(S_KOFF), 32 * ROW)
            for i in range(8):
                a.bload('buffer_load_dwordx2', T('v', b + 2 * i, 2), v(V_KOFF), srd(SRD_KV), s(S_KOFF), off=i * ROW, mods=opt.kmods)
                vm.issue(('K', k))
        def issueE():
            if not st['esetup']: e_setup()
            p = st['e']; st['e'] += 1
            a.salu('s_lshl_b32', s(S_EOFF), s(S_PE), 9)
            a.salu('s_add_u32', s(S_EOFF), s(S_EOFF), s(S_EB))
            a.salu('s_add_u32', s(S_PE), s(S_PE), 1)
            a.salu('s_and_b32', s(S_PE), s(S_PE), 7)
            for j in range(8):
                if j % GS == 0:
                    a.salu('s_add_u32', 'm0', s(S_LB), (p % 4) * 32768 + j * 1024)
                a.bload_lds('buffer_load_dwordx4', v(V_EOFF + j), srd(SRD_EF), s(S_EOFF), off=(j % GS) * 1024, mods=opt.emods)
                vm.issue(('E', p))
        toks = []
        for m in re.finditer(r'([KE])(\d*)', prog):
            toks += [m.group(1)] * int(m.group(2) or 1)
        assert toks.count('K') == 16 and toks.count('E') == 8, prog
        ti = [0]
        qtail = [0]
        def pump(done, nowait=False):
            while True:
                if ti[0] < len(toks):
                    t = toks[ti[0]]
                    if t == 'E':
                        p = st['e']; ok = p < 4 or done >= 2 * (p - 4) + 2
                    else:
                        k = st['k']; ok = k < NB or done >= k - NB + 1
                    n = 8
                elif opt.qp == 'tail' and qtail[0] < 3:
                    t = 'Q'; ok = done >= first_free + qtail[0] + 1; n = 4
                else:
                    break
                if not ok: break
                if len(vm.q) + n > opt.maxvm:
                    if nowait: break
                    need = [x for x in (('K', done), ('E', done >> 1)) if vm.has(x)]
                    if done < NCHUNK and need and vm.last(vm.q[0]) < max(vm.last(x) for x in need):
                        vm.wait(vm.q[0]); continue
                    if done < NCHUNK and (st['k'] <= done or st['e'] <= done >> 1):
                        vm.wait(vm.q[0]); continue
                    break
                if t == 'E': issueE(); ti[0] += 1
                elif t == 'K': issueK(); ti[0] += 1
                else:
                    self.q_load_piece(vm, QA, S_QOFF, qtail[0]); qtail[0] += 1
        pump(0, True)
        if not st['esetup']:
            e_setup()
        c_setup()
        self.late_setup()
        self.stamp(1)
        pump(0)
        def acc(j, t):
            if not isV: grp, z = t, j
            else: grp, z = (j & 1) + 2 * (t >> 1), (j >> 1) * 2 + (t & 1)
            return T('v', V_ACC + (grp * 4 + z) * 4, 4)
        for k in range(NCHUNK):
            b = buf(k)
            p, hf = k >> 1, k & 1
            assert st['k'] > k and st['e'] > p, ('program deadlock', prog, k)
            tags = [t for t in (('K', k), ('E', p)) if vm.has(t)]
            if tags:
                vm.wait(max(tags, key=vm.last))
            if opt.pst and k in (0, 3, 6, 8, 10, 12, 14): self.stamp(1 + (0, 3, 6, 8, 10, 12, 14).index(k), True)
            pos = p % 4
            for t in range(4):
                a.dsread('ds_read_b128', T('v', V_EF + 4 * t, 4), v(V_ERD + hf + 2 * (pos >> 1)), off=(pos & 1) * 32768 + t * 2048)
            for j in range(4):
                for m in range(4):
                    s1 = b + 2 * (2 * m) + (j >> 1)
                    s0 = b + 2 * (2 * m + 1) + (j >> 1)
                    a.valu('v_perm_b32', v(V_F + 4 * j + m), v(s0), v(s1), s(S_PHI if j & 1 else S_PLO))
            a.waitcnt(lgkm=0)
            pump(k + 1)
            if k == opt.ba: a.barrier()
            if k == opt.b0 and opt.qh == 'b0': a.barrier()
            for j in range(4):
                for t in range(4):
                    fk = T('v', V_F + 4 * j, 4)
                    fe = T('v', V_EF + 4 * t, 4)
                    A, B = (fe, fk) if isV else (fk, fe)
                    a.mfma('v_mfma_f32_16x16x32_bf16', acc(j, t), A, B, '0' if k == 0 else acc(j, t))
            if k == 7: self.stamp(2)
        return vm

    def reduce_store(self, isV, vm):
        a = self.a; opt = self.opt
        t0 = V_TMP
        L = v(V_LANE)
        self.stamp(3)
        a.valu('v_add_u32', v(t0), s(S_LB), v(V_LB))
        for d in (1, 2, 3):
            a.salu('s_xor_b32', s(S_T0), s(S_LB), d << 13)
            a.valu('v_add_u32', v(t0 + d), s(S_T0), v(V_LB))
        for d in (1, 2, 3):
            for z in range(4):
                a.dswrite('ds_write_b128', v(t0), T('v', V_ACC + (d * 4 + z) * 4, 4), off=(d >> 1) * 32768 + (d & 1) * 4096 + z * 1024)
        a.salu('s_mul_i32', s(S_WSOFF), s(S_HEAD), WS_HEAD)
        a.salu('s_lshl_b32', s(S_T0), s(S_TK), 13)
        a.salu('s_add_u32', s(S_WSOFF), s(S_WSOFF), s(S_T0))
        if not isV:
            a.salu('s_lshl_b32', s(S_T0), s(S_WAVE), 11)
            a.salu('s_add_u32', s(S_WSOFF), s(S_WSOFF), s(S_T0))
            a.salu('s_add_u32', s(S_WSOFF + 1), s(S_WSOFF), 1024)
        else:
            a.salu('s_and_b32', s(S_T0), s(S_WAVE), 1)
            a.salu('s_lshl_b32', s(S_T0), s(S_T0), 11)
            a.salu('s_add_u32', s(S_WSOFF), s(S_WSOFF), s(S_T0))
            a.salu('s_lshr_b32', s(S_T0), s(S_WAVE), 1)
            a.salu('s_lshl_b32', s(S_T0), s(S_T0), 10)
            a.salu('s_add_u32', s(S_WSOFF), s(S_WSOFF), s(S_T0))
            a.salu('s_add_u32', s(S_WSOFF + 1), s(S_WSOFF), 4096)
        a.waitcnt(lgkm=0)
        a.barrier()
        RB = 124
        for d in (1, 2, 3):
            for z in range(4):
                a.dsread('ds_read_b128', T('v', RB + ((d - 1) * 4 + z) * 4, 4), v(t0 + d), off=(d >> 1) * 32768 + (d & 1) * 4096 + z * 1024)
        a.waitcnt(lgkm=8)
        for e in range(16):
            a.valu('v_add_f32', v(V_ACC + e), v(V_ACC + e), v(RB + e))
        a.waitcnt(lgkm=0)
        for e in range(16):
            a.valu('v_add_f32', v(RB + 16 + e), v(RB + 16 + e), v(RB + 32 + e))
        for e in range(16):
            a.valu('v_add_f32', v(V_ACC + e), v(V_ACC + e), v(RB + 16 + e))
        def sm(z, i): return v(V_ACC + z * 4 + i)
        PK = V_F
        for u in range(2):
            if not isV:
                pairs = [(sm(0, 2*u), sm(1, 2*u)), (sm(2, 2*u), sm(3, 2*u)), (sm(0, 2*u+1), sm(1, 2*u+1)), (sm(2, 2*u+1), sm(3, 2*u+1))]
            else:
                pairs = [(sm(2*u, 0), sm(2*u, 1)), (sm(2*u, 2), sm(2*u, 3)), (sm(2*u+1, 0), sm(2*u+1, 1)), (sm(2*u+1, 2), sm(2*u+1, 3))]
            for m, (lo, hi) in enumerate(pairs):
                a.valu('v_cvt_pk_bf16_f32', v(PK + 4 * u + m), lo, hi)
            for m in range(4):
                a.valu('v_min_u32', v(PK + 4 * u + m), -2, v(PK + 4 * u + m))
            a.bstore('buffer_store_dwordx4', T('v', PK + 4 * u, 4), v(V_LB), srd(SRD_WS), s(S_WSOFF + u), mods='sc1')
            vm.issue('wsst')
        self.stamp(4)

    def clear_and_flag(self):
        a = self.a
        build_srd(a, SRD_WS, S_WS, 32 * WS_HEAD)
        a.valu('v_lshlrev_b32', v(V_LB), 4, v(V_LANE))
        for i in range(4): a.valu('v_mov_b32', v(P2_S + i), -1)
        a.salu('s_mul_i32', s(S_T0), s(S_HEAD), WS_HEAD)
        a.salu('s_lshl_b32', s(S_T1), s(S_TK), 13)
        a.salu('s_add_u32', s(S_T0), s(S_T0), s(S_T1))
        a.salu('s_add_u32', s(S_T1), s(S_T0), 4096)
        for i in range(8):
            a.bstore('buffer_store_dwordx4', T('v', P2_S, 4), v(V_LB), srd(SRD_WS), s(S_T0 + (i >> 2)), off=(i & 3) * 1024, mods='sc1')
    def raise_flag(self):
        a = self.a
        a.salu('s_mul_i32', s(S_T0), s(S_HEAD), 6)
        a.salu('s_add_u32', s(S_T0), s(S_T0), s(S_TK))
        a.valu('v_mov_b32', v(P2_S + 4), 1)
        a.valu('v_mov_b32', v(P2_S + 5), 0)
        a.valu('v_cmp_eq_u32', 'vcc', 0, v(V_LANE))
        a.waitcnt(vm=0)
        a.salu('s_and_saveexec_b64', f's[{S_EX}:{S_EX+1}]', 'vcc')
        a.bstore('buffer_store_byte', v(P2_S + 4), v(P2_S + 5), srd(SRD_DBG), s(S_T0), off=64, mods='sc1')
        a.salu('s_mov_b64', 'exec', f's[{S_EX}:{S_EX+1}]')

    def wait_flags(self):
        a = self.a
        top = self.lbl('FL'); out = self.lbl('FLX')
        a.valu('v_min_u32', v(P2_T), 5, v(V_LANE))
        a.salu('s_mul_i32', s(S_T3), s(S_HEAD), 6)
        a.salu('s_mov_b32', s(S_T2), hex(self.opt.spin))
        a.salu('s_mov_b64', f's[{S_EX}:{S_EX+1}]', 'exec')
        a.salu('s_mov_b64', 'exec', 63)
        a.label(top)
        a.bload('buffer_load_ubyte', v(P2_T + 2), v(P2_T), srd(SRD_DBG), s(S_T3), off=64, mods='sc1')
        a.waitcnt(vm=0)
        a.valu('v_cmp_ne_u32', 'vcc', 1, v(P2_T + 2))
        a.branch('s_cbranch_vccz', out)
        a.other('s_sleep 40')
        a.salu('s_sub_u32', s(S_T2), s(S_T2), 1)
        a.salu('s_cmp_lg_u32', s(S_T2), 0, nodst=True)
        a.branch('s_cbranch_scc1', top)
        a.label(out)
        a.salu('s_mov_b64', 'exec', f's[{S_EX}:{S_EX+1}]')

    def cheap_poll(self):
        a = self.a
        top = self.lbl('PL'); out = self.lbl('PLX')
        a.valu('v_min_u32', v(P2_T), 5, v(V_LANE))
        a.valu('v_lshlrev_b32', v(P2_T), 13, v(P2_T))
        a.salu('s_mov_b32', s(S_T2), hex(self.opt.spin))
        a.salu('s_mov_b64', f's[{S_EX}:{S_EX+1}]', 'exec')
        a.salu('s_mov_b64', 'exec', 63)
        a.label(top)
        a.bload('buffer_load_dword', v(P2_T + 2), v(P2_T), srd(SRD_WS), s(S_WSOFF), off=1024, mods='sc1')
        a.waitcnt(vm=0)
        if self.opt.pollall:
            a.valu('v_cmp_eq_u32', 'vcc', -1, v(P2_T + 2))
            a.branch('s_cbranch_vccz', out)
        else:
            a.valu('v_cmp_ne_u32', 'vcc', -1, v(P2_T + 2))
            a.branch('s_cbranch_vccnz', out)
        a.other(f's_sleep {self.opt.pollsleep}')
        a.salu('s_sub_u32', s(S_T2), s(S_T2), 1)
        a.salu('s_cmp_lg_u32', s(S_T2), 0, nodst=True)
        a.branch('s_cbranch_scc1', top)
        a.label(out)
        a.salu('s_mov_b64', 'exec', f's[{S_EX}:{S_EX+1}]')

    def sweep(self, vm, mid=None):
        a = self.a
        def ld(tk):
            a.salu('s_add_u32', s(S_T0), s(S_WSOFF), tk * 8192)
            for u in range(2):
                a.bload('buffer_load_dwordx4', T('v', P2_ST + 8 * tk + 4 * u, 4), v(V_LB), srd(SRD_WS), s(S_T0), off=u * 1024, mods='sc1')
        for tk in range(6):
            ld(tk); vm.issue('sw'); vm.issue('sw')
        if mid: mid()
        a.salu('s_mov_b32', s(S_MASK), 63)
        a.salu('s_mov_b32', s(S_T2), hex(self.opt.spin))
        top = self.lbl('SW'); out = self.lbl('SWX')
        a.label(top)
        a.waitcnt(vm=0)
        vm.q = []
        a.salu('s_add_u32', s(S_CNT), s(S_CNT), 1)
        for tk in range(6):
            nxt = self.lbl('SWN')
            a.salu('s_bitcmp1_b32', s(S_MASK), tk, nodst=True)
            a.branch('s_cbranch_scc0', nxt)
            b = P2_ST + 8 * tk
            m = v(P2_T)
            a.valu('v_max3_u32', m, v(b), v(b + 1), v(b + 2))
            a.valu('v_max3_u32', m, m, v(b + 3), v(b + 4))
            a.valu('v_max3_u32', m, m, v(b + 5), v(b + 6))
            a.valu('v_max_u32', m, m, v(b + 7))
            a.valu('v_cmp_eq_u32', 'vcc', -1, m)
            again = self.lbl('SWA')
            a.branch('s_cbranch_vccnz', again)
            for u in range(2):
                if tk < 3:
                    a.dswrite('ds_write_b128', v(V_KA), T('v', b + 4 * u, 4), off=tk * 4096 + u * 512)
                else:
                    a.dswrite('ds_write_b128', v(V_VA + tk - 3), T('v', b + 4 * u, 4), off=u * 2048)
            a.salu('s_bitset0_b32', s(S_MASK), tk)
            a.branch('s_branch', nxt)
            a.label(again)
            ld(tk)
            a.label(nxt)
        a.salu('s_cmp_eq_u32', s(S_MASK), 0, nodst=True)
        a.branch('s_cbranch_scc1', out)
        a.salu('s_sub_u32', s(S_T2), s(S_T2), 1)
        a.salu('s_cmp_lg_u32', s(S_T2), 0, nodst=True)
        a.branch('s_cbranch_scc1', top)
        a.waitcnt(vm=0)
        a.label(out)
        a.waitcnt(lgkm=0)

    def phase2(self, Q, soff):
        a = self.a; opt = self.opt
        MF = 'v_mfma_f32_32x32x16_bf16'
        seq = [(s_, mt) for s_ in range(12) for mt in range(2)]
        NF = 4
        def rd(i, off):
            a.dsread('ds_read_b128', T('v', P2_FR + 4 * (i % NF), 4), v(V_LBK), off=off)
        def koff(i): s_, mt = seq[i]; return (mt * 12 + s_) * 1024
        def fst(i):
            if opt.p2st and Q == QA: self.stamp(i, True)
        fst(1)
        for i in range(NF - 1): rd(i, koff(i))
        for i, (s_, mt) in enumerate(seq):
            if i + NF - 1 < len(seq):
                rd(i + NF - 1, koff(i + NF - 1))
                a.waitcnt(lgkm=NF - 1)
            else:
                a.waitcnt(lgkm=len(seq) - 1 - i)
            acc = T('v', P2_S + 16 * mt, 16)
            a.mfma(MF, acc, T('v', P2_FR + 4 * (i % NF), 4), T('v', Q + 4 * s_, 4), '0' if s_ == 0 else acc)
        seq2 = [(t, s_) for t in range(6) for s_ in range(4)]
        def voff(i): t, s_ = seq2[i]; return 24576 + (t * 4 + s_) * 1024
        x = [v(P2_S + i) for i in range(32)]
        m, t = v(P2_T), v(P2_T + 1)
        a.valu('v_max3_f32', m, x[0], x[1], x[2])
        for i in range(3, 31, 2):
            a.valu('v_max3_f32', m, m, x[i], x[i + 1])
        a.valu('v_max_f32', m, m, x[31])
        fst(2)
        for i in range(NF - 1): rd(i, voff(i))
        a.valu('v_mov_b32', t, m)
        a.valu('v_permlane32_swap_b32', m, t)
        a.valu('v_max_f32', m, m, t)
        c = (192 ** -0.5) * math.log2(math.e)
        cbits = struct.unpack('<I', struct.pack('<f', c))[0]
        a.salu('s_mov_b32', s(S_SCALE), hex(cbits))
        a.valu('v_mul_f32', m, s(S_SCALE), m)
        for i in range(32):
            a.valu('v_fma_f32', x[i], x[i], s(S_SCALE), f'-{m}')
        for i in range(32):
            a.valu('v_exp_f32', x[i], x[i])
        l0, l1 = v(P2_T + 2), v(P2_T + 3)
        a.valu('v_add_f32', l0, x[0], x[1])
        a.valu('v_add_f32', l1, x[2], x[3])
        for i in range(4, 32, 2):
            a.valu('v_add_f32', l0, l0, x[i])
            a.valu('v_add_f32', l1, l1, x[i + 1])
        a.valu('v_add_f32', l0, l0, l1)
        a.valu('v_mov_b32', t, l0)
        a.valu('v_permlane32_swap_b32', l0, t)
        a.valu('v_add_f32', l0, l0, t)
        a.valu('v_rcp_f32', l0, l0)
        for i in range(32):
            a.valu('v_mul_f32', x[i], x[i], l0)
        for i in range(16):
            a.valu('v_cvt_pk_bf16_f32', v(P2_P + i), x[2 * i], x[2 * i + 1])
        fst(3)
        for i, (tt, s_) in enumerate(seq2):
            if i + NF - 1 < len(seq2):
                rd(i + NF - 1, voff(i + NF - 1))
                a.waitcnt(lgkm=NF - 1)
            else:
                a.waitcnt(lgkm=len(seq2) - 1 - i)
            acc = T('v', P2_O + 16 * tt, 16)
            a.mfma(MF, acc, T('v', P2_P + 4 * s_, 4), T('v', P2_FR + 4 * (i % NF), 4), '0' if s_ == 0 else acc)
        for i in range(16):
            pk = P2_PKO + 4 * (i % 8)
            if i == 1: fst(4)
            if i == 8: fst(5)
            for k in range(3):
                a.valu('v_cvt_pk_bf16_f32', v(pk + k), v(P2_O + 16 * (2 * k) + i), v(P2_O + 16 * (2 * k + 1) + i))
            a.bstore('buffer_store_dwordx3', T('v', pk, 3), v(V_OOFF), srd(SRD_O), s(soff + (i >> 2)), off=(i & 3) * ROW, mods=opt.omods)

    def build(self):
        a = self.a; opt = self.opt
        self.stamp(0)
        self.prologue('L_END')
        a.salu('s_cmp_ge_u32', s(S_TK), 6, nodst=True)
        a.branch('s_cbranch_scc1', 'L_NP')
        a.salu('s_cmp_ge_u32', s(S_WAVE), 4, nodst=True)
        a.branch('s_cbranch_scc1', 'L_HELP')
        progs = opt.prog.split(',')
        self.inprod = True
        a.salu('s_cmp_ge_u32', s(S_TK), 3, nodst=True)
        a.branch('s_cbranch_scc1', 'L_PV')
        for isV in (False, True):
            nm = 'V' if isV else 'K'
            if isV: a.label('L_PV')
            vms = []
            if len(progs) == 2:
                a.salu('s_add_u32', s(S_T0), s(S_HEAD), s(S_TK))
                a.salu('s_bitcmp1_b32', s(S_T0), 0, nodst=True)
                a.branch('s_cbranch_scc1', f'L_P{nm}1')
            for pi, prog in enumerate(progs):
                if pi: a.label(f'L_P{nm}{pi}')
                vm = self.phase1(isV, prog)
                vms.append(list(vm.q))
                if pi + 1 < len(progs): a.branch('s_branch', f'L_R{nm}')
            assert all(x == vms[0] for x in vms), vms
            if len(progs) > 1: a.label(f'L_R{nm}')
            self.reduce_store(isV, vm)
            if not isV: a.branch('s_branch', 'L_PJ')
        a.label('L_PJ')
        if opt.qp == 'store': self.q_load(vm, QA, S_QOFF)
        if opt.qp in ('tail', 'store'):
            self.q_convert(vm, QA)
        a.barrier()
        self.stamp(6)
        a.salu('s_cmp_eq_u32', s(S_NT), 0, nodst=True)
        a.branch('s_cbranch_scc1', 'L_FIN')
        if opt.qp == 'b3':
            self.q_load(vm, QA, S_QOFF)
            self.q_convert(vm, QA)
            self.stamp(7)
        a.branch('s_branch', 'L_P2A')
        self.inprod = False
        a.label('L_HELP')
        vm = VM(a)
        if opt.hprio: a.other(f's_setprio {opt.hprio}')
        a.salu('s_cmp_eq_u32', s(S_WAVE), 4, nodst=True)
        a.branch('s_cbranch_scc0', 'L_H0')
        self.clear_and_flag()
        a.label('L_H0')
        self.late_setup()
        self.sweep_setup()
        a.salu('s_cmp_eq_u32', s(S_WAVE), 4, nodst=True)
        a.branch('s_cbranch_scc0', 'L_H1')
        self.raise_flag()
        a.label('L_H1')
        self.stamp(1)
        if opt.qh == 'start':
            self.q_load(vm, QA, S_QOFF)
            self.q_convert(vm, QA)
        a.barrier()
        a.salu('s_cmp_eq_u32', s(S_WAVE), 5, nodst=True)
        a.branch('s_cbranch_scc0', 'L_H2')
        self.wait_flags()
        a.label('L_H2')
        self.stamp(2)
        if opt.qh == 'b0':
            a.barrier()
            self.q_load(vm, QA, S_QOFF)
        self.stamp(3)
        a.barrier()
        self.stamp(4)
        self.sweep(vm, mid=(lambda: self.q_convert(vm, QA)) if opt.qh == 'b0' else None)
        self.stamp(5)
        a.barrier()
        self.stamp(6)
        a.branch('s_branch', 'L_P2A')
        a.label('L_NP')
        vm = VM(a)
        if opt.warm:
            a.valu('v_lshlrev_b32', v(P2_T), 4, v(V_LANE))
            a.salu('s_and_b32', s(S_T0), s(S_HEAD), 3)
            a.salu('s_lshl_b32', s(S_T0), s(S_T0), 16)
            a.salu('s_lshl_b32', s(S_T1), s(S_WAVE), 13)
            a.salu('s_add_u32', s(S_T0), s(S_T0), s(S_T1))
            a.salu('s_add_u32', s(S_T1), s(S_T0), 4096)
            for i in range(8):
                a.bload('buffer_load_dwordx4', T('v', 28 + 4 * i, 4), v(P2_T), srd(SRD_EF), s(S_T0 + (i >> 2)), off=(i & 3) * 1024)
                vm.issue('warm')
        self.late_setup()
        self.sweep_setup()
        self.stamp(1)
        self.q_load(vm, QA, S_QOFF)
        if opt.A < 8:
            a.salu('s_cmp_lt_u32', s(S_NT), 2, nodst=True)
            a.branch('s_cbranch_scc1', 'L_N1')
            vm2 = VM(a); vm2.q = list(vm.q)
            self.q_load(vm2, QB, S_QOFF2)
            self.q_convert(vm2, QA)
            self.q_convert(vm2, QB)
            a.branch('s_branch', 'L_N2')
            a.label('L_N1')
        self.q_convert(vm, QA)
        if opt.A < 8: a.label('L_N2')
        self.stamp(2)
        a.salu('s_cmp_eq_u32', s(S_WAVE), 4, nodst=True)
        a.branch('s_cbranch_scc0', 'L_N4')
        self.wait_flags()
        a.label('L_N4')
        a.barrier()
        a.salu('s_cmp_lt_u32', s(S_WAVE), 4, nodst=True)
        a.branch('s_cbranch_scc1', 'L_N3')
        self.stamp(3)
        self.cheap_poll()
        self.stamp(4)
        self.sweep(VM(a))
        self.stamp(5)
        a.label('L_N3')
        a.barrier()
        self.stamp(6)
        if opt.A < 8:
            a.salu('s_cmp_lt_u32', s(S_NT), 2, nodst=True)
            a.branch('s_cbranch_scc1', 'L_P2A')
            self.phase2(QB, S_QOFF2)
            self.stamp(7)
        a.label('L_P2A')
        self.phase2(QA, S_QOFF)
        a.label('L_FIN')
        self.stamp_out()
        a.label('L_END')
        a.other('s_endpgm')
        kn = NAME + '_kernel'
        out = HEADER
        out += f'; @launch grid=(256,1,1) block=(512,1,1) lds={LDS_BYTES}\n'
        out += '.amdgcn_target "amdgcn-amd-amdhsa--gfx950"\n.text\n'
        out += f'.globl {kn}\n.p2align 8\n.type {kn},@function\n{kn}:\n' + a.text()
        out += f'''.section .rodata,"a"
.p2align 6
.amdhsa_kernel {kn}
  .amdhsa_next_free_vgpr 256
  .amdhsa_next_free_sgpr 102
  .amdhsa_accum_offset 256
  .amdhsa_group_segment_fixed_size 0
  .amdhsa_kernarg_size 64
  .amdhsa_user_sgpr_count 2
  .amdhsa_user_sgpr_kernarg_segment_ptr 1
  .amdhsa_system_sgpr_workgroup_id_x 1
.end_amdhsa_kernel
'''
        return out

def main():
    ap = argparse.ArgumentParser()
    ap.add_argument('--kmods', default='nt')
    ap.add_argument('--emods', default='')
    ap.add_argument('--qmods', default='nt')
    ap.add_argument('--omods', default='nt')
    ap.add_argument('--nbuf', type=int, default=6)
    ap.add_argument('--maxvm', type=int, default=63)
    ap.add_argument('--rot', type=int, default=1)
    ap.add_argument('--prog', default='K4E4K10E4K2')
    ap.add_argument('--A', type=int, default=8)
    ap.add_argument('--b0', type=int, default=10)
    ap.add_argument('--qp', default='b3')
    ap.add_argument('--hprio', type=int, default=3)
    ap.add_argument('--pst', type=int, default=0)
    ap.add_argument('--p2st', type=int, default=0)
    ap.add_argument('--ba', type=int, default=3)
    ap.add_argument('--qh', default='b0')
    ap.add_argument('--warm', type=int, default=1)
    ap.add_argument('--spin', type=int, default=100000)
    ap.add_argument('--pollall', type=int, default=0)
    ap.add_argument('--pollsleep', type=int, default=8)
    ap.add_argument('--stamps', type=int, default=0)
    ap.add_argument('--enc', default='a0')
    ap.add_argument('-o', default='cdna_kernels/' + NAME + '.s')
    opt = ap.parse_args()
    open(opt.o, 'w').write(G(opt).build())

if __name__ == '__main__':
    main()
```

```python
import sys,re
src=open(sys.argv[1]).read().split('\n')
start=int(sys.argv[3]) if len(sys.argv)>3 else 8
which=int(sys.argv[4]) if len(sys.argv)>4 else 3
prio=int(sys.argv[5]) if len(sys.argv)>5 else 0
def idx(lbl): return src.index(lbl+':')
iPV,iPJ,iH,iH0,iEND=idx('L_PV'),idx('L_PJ'),idx('L_HELP'),idx('L_H0'),idx('L_END')
def last(pat,lo,hi):
    c=[i for i in range(lo,hi) if src[i].strip()==pat]; assert len(c)==1,(pat,c); return c[0]
dk=last(f's_waitcnt vmcnt({start})',0,iPV); dv=last(f's_waitcnt vmcnt({start})',iPV,iPJ)
for lo,hi in ((dk,iPV),(dv,iPJ)):
    assert not any('buffer_' in src[i] or 'barrier' in src[i] for i in range(lo,hi))
npad=0; iS=idx('L_S'); out=[]; ent=False; hk=False
for i,l in enumerate(src):
    t=l.strip()
    if i==dk: out.append('L_DK:')
    if i==dv: out.append('L_DV:')
    if (dk<=i<iPV) or (dv<=i<iH):
        if t=='s_mov_b64 exec, 1': l='    s_mov_b64 exec, s[78:79]'
        elif t=='s_mov_b64 exec, -1': l='    s_mov_b64 exec, s[80:81]'
        else: assert 'exec' not in t, t
    if i==iH-1:
        assert t=='s_branch L_S'; out.append('    s_cbranch_execz L_DRET')
    if i==iEND: out.append('    s_cbranch_execz L_DRET')
    if i>iH0 and not hk and t=='s_cbranch_scc0 L_H1':
        l='    s_cbranch_scc0 L_DRY'; hk=True
    if t.startswith('.section .rodata'):
        b=['L_DRY:','v_mov_b32 v9, 2',f's_setprio {prio}','s_mov_b32 s71, s60','s_mov_b32 s67, 0','s_mov_b32 s76, 0','s_mov_b32 s46, 2',
           's_mov_b32 s48, 0','s_mov_b32 s49, 0',
           's_mov_b64 s[78:79], 0','s_mov_b64 s[80:81], 0','s_mov_b64 vcc, 0','s_mov_b64 exec, 0','s_cmp_eq_u32 s44, 4']
        b+=['s_cbranch_scc1 '+('L_S' if which&1 else 'L_DRET')]
        if which&2: b+=['s_cmp_ge_u32 s47, 4','s_cbranch_scc1 L_DV','s_branch L_DK']
        b+=['L_DRET:','s_mov_b64 exec, -1','s_setprio 3','s_branch L_H1']
        out+=[x if x.endswith(':') else '    '+x for x in b]
    inreg=(which&2 and iPJ<i<iH) or (which&1 and iS<i<iEND)
    isb=inreg and t.startswith('buffer_')
    if isb and not src[i-1].strip().startswith('buffer_'):
        npad+=1; out.append(f'    s_cbranch_execz L_DS{npad}')
    out.append(l)
    if isb and not src[i+1].strip().startswith('buffer_'): out.append(f'L_DS{npad}:')
    if not ent and t.startswith('ds_write_b32 v2, v20'):
        out+=['    s_mov_b64 s[78:79], 1','    s_mov_b64 s[80:81], -1']; ent=True
assert hk and ent
open(sys.argv[2],'w').write('\n'.join(out))
print('pads',npad)
```
